```python
import torch

def _softmax(x, axis=-1):
    return torch.softmax(x, dim=axis)
def _gelu(x):
    return torch.nn.functional.gelu(x, approximate="tanh")
def _silu(x):
    return torch.nn.functional.silu(x)
def _sigmoid(x):
    return torch.sigmoid(x)
def _layernorm(x, axis=-1, eps=1e-5):
    m = x.mean(dim=axis, keepdim=True)
    v = x.var(dim=axis, keepdim=True, unbiased=False)
    return (x - m) / torch.sqrt(v + eps)
def _scatter_add(tgt, idx, src, axis=0):
    return tgt.clone().index_add_(axis, idx, src)
def _segment_sum(src, seg, n):
    out = torch.zeros((n,) + src.shape[1:], dtype=src.dtype)
    return out.index_add_(0, seg, src)
def _pad(x, pw):
    flat = tuple(v for pair in reversed(pw) for v in pair)
    return torch.nn.functional.pad(x, flat)

kernel_name = 'standalone__cheap_equivariant_egnn__graph'

def setup_inputs():

    _w = (lambda a: (lambda t: t.to(torch.bfloat16) if t.is_floating_point() else t)(torch.as_tensor(a)))
    N, deg, D, De = 25000, 16, 128, max(0, 1)
    E = N * deg
    return {
        "h": _w((lambda *s: torch.randn(*s, dtype=torch.bfloat16) * 0.2)(N, D)),
        "pos": _w((lambda *s: torch.randn(*s, dtype=torch.bfloat16) * 0.8)(N, 3)),
        "e_attr": _w((lambda *s: torch.randn(*s, dtype=torch.bfloat16) * 0.8)(E, De)),
        "src": _w((lambda lo, hi, *s: torch.randint(lo, hi, s))(0, N, E).to(torch.int64)),
        "dst": _w((lambda lo, hi, *s: torch.randint(lo, hi, s))(0, N, E).to(torch.int64)),
        "w_e": _w(0.1 * (lambda *s: torch.randn(*s, dtype=torch.bfloat16) * 0.8)(2 * D + 1 + De, D)),
        "w_x": _w(0.1 * (lambda *s: torch.randn(*s, dtype=torch.bfloat16) * 0.2)(D, 1)),
        "w_h": _w(0.1 * (lambda *s: torch.randn(*s, dtype=torch.bfloat16) * 0.2)(2 * D, D)),
    }

def reference(h, pos, e_attr, src, dst, w_e, w_x, w_h):
    N, D = h.shape[0], h.shape[1]
    diff = pos[dst] - pos[src]
    dist2 = torch.sum(diff * diff, axis=-1, keepdims=True)
    e_in = torch.concatenate([h[dst], h[src], dist2, e_attr], axis=-1)
    m_ij = _silu(e_in @ w_e)
    coord_scale = m_ij @ w_x
    pos_new = pos + _segment_sum(diff * coord_scale, dst, N)
    m_i = _segment_sum(m_ij, dst, N)
    h_new = h + _silu(torch.concatenate([h, m_i], axis=-1) @ w_h)
    return h_new, pos_new
```

```python
import re


class Asm:
    def __init__(self):
        self.lines = []

    def __call__(self, s):
        for ln in s.split("\n"):
            ln = ln.strip()
            if ln:
                self.lines.append(ln)

    def label(self, name):
        self.lines.append(name + ":")

    def text(self):
        out = []
        for ln in self.lines:
            if ln.endswith(":") or ln.startswith(".") or ln.startswith(";"):
                out.append(ln)
            else:
                out.append("    " + ln)
        return "\n".join(out) + "\n"


def v(a, n=1):
    return f"v{a}" if n == 1 else f"v[{a}:{a + n - 1}]"


def s(a, n=1):
    return f"s{a}" if n == 1 else f"s[{a}:{a + n - 1}]"


class Alloc:
    def __init__(self, start=0, limit=None):
        self.p = start
        self.limit = limit

    def __call__(self, n=1, align=1):
        self.p = (self.p + align - 1) // align * align
        r = self.p
        self.p += n
        assert self.limit is None or self.p <= self.limit, (self.p, self.limit)
        return r


_REG = re.compile(r"\b([vs])(\d+)\b|\b([vs])\[(\d+):(\d+)\]|\b(vcc|exec|m0|vcc_lo|vcc_hi|exec_lo|exec_hi)\b")
TRANS = ("v_exp_", "v_log_", "v_rcp_", "v_rsq_", "v_sqrt_", "v_sin_", "v_cos_")


def regs_of(op):
    out = set()
    for m in _REG.finditer(op):
        if m.group(1):
            out.add(m.group(1) + m.group(2))
        elif m.group(3):
            for i in range(int(m.group(4)), int(m.group(5)) + 1):
                out.add(m.group(3) + str(i))
        else:
            g = m.group(6)
            out.add(g.split("_")[0])
    return out


def split_ops(rest):
    ops, depth, cur = [], 0, ""
    for ch in rest:
        if ch == "[":
            depth += 1
        if ch == "]":
            depth -= 1
        if ch == "," and depth == 0:
            ops.append(cur.strip())
            cur = ""
        else:
            cur += ch
    if cur.strip():
        ops.append(cur.strip())
    return ops


class Ins:
    def __init__(self, line):
        line = line.split(";")[0].strip()
        self.line = line
        p = line.split(None, 1)
        self.op = p[0]
        ops = split_ops(p[1]) if len(p) > 1 else []
        if ops:
            last = ops[-1].split()
            self.mods = " ".join(last[1:])
            ops[-1] = last[0]
        else:
            self.mods = ""
        self.ops = ops
        o = self.op
        self.mfma = o.startswith("v_mfma")
        self.valu = o.startswith("v_") and not self.mfma
        self.trans = o.startswith(TRANS)
        self.ds = o.startswith("ds_")
        self.vmem = o.startswith(("buffer_", "global_"))
        self.salu = o.startswith("s_")
        self.dpp = "_dpp" in o
        self.dot = o.startswith("v_dot")
        self.w, self.r = set(), set()
        R = [regs_of(x) for x in ops]
        un = lambda xs: set().union(*xs) if xs else set()
        if self.mfma:
            self.w, self.r = R[0], un(R[1:])
            self.ab, self.c = R[1] | R[2], R[3]
        elif self.valu:
            self.w, self.r = set(R[0]), un(R[1:])
            if o.startswith(("v_permlane16_swap", "v_permlane32_swap")):
                self.w = R[0] | R[1]
                self.r = R[0] | R[1]
            if o.startswith(("v_fmac", "v_dot2c", "v_writelane")) or self.dpp:
                self.r |= R[0]
            if "_co_" in o:
                self.w |= R[1]
            if o.startswith("v_cmpx"):
                self.w |= {"exec"}
        elif self.ds:
            if o.startswith("ds_read") or "_rtn_" in o or "permute" in o or "swizzle" in o:
                self.w, self.r = R[0], un(R[1:])
            else:
                self.r = un(R)
        elif self.vmem:
            if "load" in o and "lds" not in self.mods and "_lds_" not in o:
                self.w, self.r = R[0], un(R[1:])
            else:
                self.r = un(R)
            self.lds_dma = "lds" in self.mods.split() or "_lds_" in o
        elif self.salu:
            if o.startswith(("s_cmp", "s_cbranch", "s_branch", "s_waitcnt", "s_nop", "s_barrier", "s_setprio", "s_endpgm", "s_sleep", "s_bitcmp")):
                self.r = un(R)
            else:
                self.w, self.r = (R[0] if R else set()), un(R[1:])
                if "saveexec" in o:
                    self.w |= {"exec"}

    def states(self):
        if self.op == "s_nop":
            return int(self.ops[0], 0) + 1
        return 1


def need(p, c):
    n = 0
    vw = {x for x in p.w if x[0] == "v" and x not in ("vcc",)}
    sw = {x for x in p.w if x[0] == "s" or x == "vcc"}
    if p.mfma:
        passes = 8 if "32x32" in p.op else 4
        big = {8: 12, 4: 8}[passes]
        if c.mfma:
            if p.w & c.ab:
                n = max(n, big)
            if p.w & c.c and not (p.w == c.c and p.op == c.op):
                n = max(n, big - 2)
            if p.w & c.w and not (p.w & c.c):
                n = max(n, 0)
        elif (c.valu or c.ds or c.vmem) and (p.w & (c.r | c.w)):
            n = max(n, big)
        if c.valu and (p.c & c.w):
            n = max(n, {8: 7, 4: 3}[passes])
    if p.valu:
        if c.mfma and (vw & c.r):
            n = max(n, 2)
        if c.mfma and "exec" in p.w:
            n = max(n, 4)
        if p.trans and c.valu and not c.trans and (vw & c.r):
            n = max(n, 1)
        if p.dot and (c.valu or c.ds or c.vmem or c.mfma) and (vw & (c.r | c.w)):
            n = max(n, 3)
        if c.dpp and (vw & c.r):
            n = max(n, 2)
        if c.op.startswith("v_permlane") and (vw & c.r):
            n = max(n, 2)
        if c.op.startswith(("v_readlane", "v_readfirstlane")) and (vw & c.r):
            n = max(n, 1)
        if c.vmem and (sw & c.r):
            n = max(n, 5)
        if c.valu and (sw & c.r):
            n = max(n, 4 if c.op.startswith(("v_readlane", "v_writelane")) else 2)
        if "exec" in p.w and c.dpp:
            n = max(n, 5)
        if "exec" in p.w and c.op.startswith(("v_readlane", "v_readfirstlane", "v_writelane", "v_permlane")):
            n = max(n, 4)
    if p.salu and "m0" in p.w and c.vmem and getattr(c, "lds_dma", False):
        n = max(n, 1)
    if p.vmem and "store" in p.op and ("x4" in p.op or "x3" in p.op) and c.valu:
        data = regs_of(p.ops[0]) if p.op.startswith("buffer_") else regs_of(p.ops[1])
        if data & c.w:
            n = max(n, 2)
    return n


def check_hazards(lines, horizon=13):
    prog, labels = [], {}
    for ln in lines:
        t = ln.split(";")[0].strip()
        if not t or t.startswith("."):
            continue
        if t.endswith(":"):
            labels[t[:-1]] = len(prog)
            continue
        prog.append(Ins(t))
    problems = set()

    def succ(i):
        o = prog[i].op
        if o == "s_endpgm":
            return []
        if o == "s_branch":
            return [labels[prog[i].ops[0]]]
        r = [i + 1] if i + 1 < len(prog) else []
        if o.startswith("s_cbranch"):
            r.append(labels[prog[i].ops[0]])
        return r

    for i, p in enumerate(prog):
        if not (p.mfma or p.valu or (p.salu and "m0" in p.w) or p.vmem):
            continue
        stack = [(j, 0) for j in succ(i)]
        seen = {}
        while stack:
            j, d = stack.pop()
            if d >= horizon or seen.get(j, 99) <= d or j >= len(prog):
                continue
            seen[j] = d
            n = need(p, prog[j])
            if n > d:
                problems.add((i, j, n, d))
            for k in succ(j):
                stack.append((k, d + prog[j].states()))
    return [f"need {n} have {d}: [{i}] {prog[i].line}  ->  [{j}] {prog[j].line}" for i, j, n, d in sorted(problems)]
```

```python
import sys, struct
from asmlib import Asm, Alloc, v, s, check_hazards

N, E, NB, CH, NWG = 25000, 400000, 98, 1568, 256
WS_BT, WS_REC, WS_TAB, WS_PS, WS_WF, WS_PROF = 0, 0x640000, 0x980000, 0xA00000, 0xA80000, 0x1000000
NEG_LOG2E = struct.unpack("<I", struct.pack("<f", -1.4426950408889634))[0]
MFMA = "v_mfma_f32_32x32x16_bf16"

OPT = dict(prof=0)
for a in sys.argv[2:]:
    k, x = a.split("=")
    OPT[k] = int(x, 0)


def srd(e, d, lo, hi, nrec, stride=0):
    e(f"s_mov_b32 {s(d)}, {lo}")
    if stride:
        e(f"s_or_b32 {s(d+1)}, {hi}, {hex(stride << 16)}")
    else:
        e(f"s_mov_b32 {s(d+1)}, {hi}")
    e(f"s_mov_b32 {s(d+2)}, {nrec}")
    e(f"s_mov_b32 {s(d+3)}, 0x20000")


def addptr(e, d, base, off):
    e(f"s_add_u32 {s(d)}, {s(base)}, {hex(off)}")
    e(f"s_addc_u32 {s(d+1)}, {s(base+1)}, 0")


def scan64(e, r):
    for m in ("row_shr:1 row_mask:0xf", "row_shr:2 row_mask:0xf", "row_shr:4 row_mask:0xf", "row_shr:8 row_mask:0xf",
              "row_bcast:15 row_mask:0xa", "row_bcast:31 row_mask:0xc"):
        e("s_nop 1")
        e(f"v_add_u32_dpp {v(r)}, {v(r)}, {v(r)} {m} bank_mask:0xf")


class Prof:
    def __init__(self, e, sbase, n):
        self.e, self.sb, self.n, self.names = e, sbase, n, []

    def __call__(self, name):
        if not OPT["prof"]:
            return
        i = len(self.names)
        assert i < self.n
        self.names.append(name)
        self.e(f"s_memtime {s(self.sb + self.n, 2)}")
        self.e("s_waitcnt lgkmcnt(0)")
        self.e(f"s_mov_b32 {s(self.sb + i)}, {s(self.sb + self.n)}")

    def store(self, ws, sW, region, tmp):
        if not OPT["prof"]:
            return
        e = self.e
        e(f"s_memrealtime {s(self.sb + self.n, 2)}")
        e(f"s_lshl_b32 s3, s2, 3")
        e(f"s_add_u32 s3, s3, {s(sW)}")
        e(f"s_lshl_b32 s3, s3, 7")
        e(f"s_add_u32 s3, s3, {hex(WS_PROF + region * 0x100000)}")
        e("s_waitcnt lgkmcnt(0)")
        e(f"v_mov_b32 {v(tmp)}, s3")
        for i in range(len(self.names)):
            e(f"v_mov_b32 {v(tmp+1)}, {s(self.sb+i)}")
            e(f"global_store_dword {v(tmp)}, {v(tmp+1)}, {s(ws,2)} offset:{4*i}")
        e(f"v_mov_b32 {v(tmp+1)}, {s(self.sb+self.n)}")
        e(f"global_store_dword {v(tmp)}, {v(tmp+1)}, {s(ws,2)} offset:124")


def k1():
    e = Asm()
    L = Alloc(0, 160 * 1024)
    CNT = L(1024, 16)
    BASE = L(1024, 16)
    RECS = L(CH * 8, 16)
    HT = L(25600, 256)
    W2 = L(32768, 256)
    OUT = L(128 * 272, 16)
    lds = L.p
    pH, pPOS, pEA, pSRC, pDST, pWE, pWX, pWH, pWS = 4, 6, 8, 10, 12, 14, 16, 18, 20
    rH, rWE = 24, 28
    sW, sE0, sLim, sNB, sT0, sT1, sC = 32, 33, 34, 35, 36, 37, 38
    sEM, sC2, sP = 40, 42, 44
    prof = Prof(e, 60, 16)
    vL, vDST, vSRC, vEA, vCA, vRK, vREC = 1, 4, 8, 12, 16, 20, 24
    t = 32
    vWF, vHF, vACC = 64, 96, 160

    e.label("egnn_prep_kernel")
    e(f"""s_cmp_ge_u32 s2, {NWG}
    s_cbranch_scc1 K1_end
    s_load_dwordx16 s[4:19], s[0:1], 0
    s_load_dwordx2 s[20:21], s[0:1], 80""")
    prof("start")
    e(f"""v_lshrrev_b32 v2, 6, v0
    v_and_b32 {v(vL)}, 63, v0
    v_readfirstlane_b32 {s(sW)}, v2
    s_mul_i32 {s(sE0)}, s2, {CH}
    s_sub_u32 {s(sLim)}, {E}, {s(sE0)}
    s_lshr_b32 {s(sLim)}, {s(sLim)}, 2
    s_min_u32 {s(sLim)}, {s(sLim)}, {CH // 4}
    s_lshl_b32 {s(sT0)}, {s(sE0)}, 1
    v_lshl_add_u32 v3, v0, 3, {s(sT0)}
    v_lshlrev_b32 v2, 1, v3
    s_mul_i32 {s(sNB)}, s2, {NB}
    v_cmp_gt_u32 vcc, {s(sLim)}, v0
    s_and_b64 {s(sEM,2)}, vcc, exec
    s_mov_b64 exec, {s(sEM,2)}
    s_waitcnt lgkmcnt(0)
    s_cbranch_execz K1_noedge
    global_load_dwordx4 {v(vDST,4)}, v2, {s(pDST,2)}
    global_load_dwordx4 {v(vSRC,4)}, v2, {s(pSRC,2)}
    global_load_dwordx2 {v(vEA,2)}, v3, {s(pEA,2)}""")
    e.label("K1_noedge")
    e("s_mov_b64 exec, -1")
    srd(e, rH, s(pH), s(pH + 1), N * 256)
    srd(e, rWE, s(pWE), s(pWE + 1), 258 * 256)
    e(f"""v_lshrrev_b32 {v(t)}, 4, v0
    v_xor_b32 {v(t+1)}, {v(t)}, v0
    v_and_b32 {v(t+1)}, 15, {v(t+1)}
    v_add_u32 {v(t+2)}, {s(sNB)}, {v(t)}
    v_lshlrev_b32 {v(t+2)}, 8, {v(t+2)}
    v_lshl_add_u32 {v(t+2)}, {v(t+1)}, 4, {v(t+2)}
    v_lshlrev_b32 {v(t+3)}, 2, {v(t)}
    v_xor_b32 {v(t+3)}, {v(t+3)}, v0
    v_and_b32 {v(t+3)}, 15, {v(t+3)}
    v_lshlrev_b32 {v(t+4)}, 8, {v(t)}
    v_lshl_add_u32 {v(t+3)}, {v(t+3)}, 4, {v(t+4)}
    v_add_u32 {v(t+3)}, {128*256}, {v(t+3)}
    s_lshl_b32 {s(sT0)}, {s(sW)}, 10""")
    for k in range(3):
        e(f"""s_add_u32 m0, {s(sT0)}, {HT + 8192*k}
        v_add_u32 {v(t+5)}, {8192*k}, {v(t+2)}
        buffer_load_dwordx4 {v(t+5)}, {s(rH,4)}, 0 offen lds""")
    for k in range(4):
        e(f"""s_add_u32 m0, {s(sT0)}, {W2 + 8192*k}
        v_add_u32 {v(t+5)}, {8192*k}, {v(t+3)}
        buffer_load_dwordx4 {v(t+5)}, {s(rWE,4)}, 0 offen lds""")
    e(f"""s_cmp_lg_u32 {s(sW)}, 0
    s_cbranch_scc1 K1_no4
    s_mov_b32 m0, {HT + 8192*3}
    v_add_u32 {v(t+5)}, {8192*3}, {v(t+2)}
    buffer_load_dwordx4 {v(t+5)}, {s(rH,4)}, 0 offen lds""")
    e.label("K1_no4")
    e(f"""v_mov_b32 {v(t)}, 0
    v_lshlrev_b32 {v(t+1)}, 1, v0
    v_and_b32 {v(t+1)}, 0x3fc, {v(t+1)}
    ds_write_b32 {v(t+1)}, {v(t)} offset:{CNT}
    s_mov_b32 {s(sC)}, {hex(NEG_LOG2E)}
    s_mov_b32 {s(sC+1)}, {hex(NEG_LOG2E)}
    s_waitcnt lgkmcnt(0)
    s_barrier""")
    prof("bar1")
    e(f"""s_cmp_eq_u32 {s(sW)}, 7
    s_cbranch_scc1 K1_side
    s_mov_b64 exec, {s(sEM,2)}
    s_cbranch_execz K1_rank_done
    v_mov_b32 {v(t+8)}, 8
    s_movk_i32 {s(sT0)}, {-NB}
    s_waitcnt vmcnt(7)""")
    prof("edges")
    for i in range(4):
        e(f"""v_mul_u32_u24 {v(t+i)}, 21400, {v(vDST+i)}
        v_lshrrev_b32 {v(t+i)}, 21, {v(t+i)}
        v_lshlrev_b32 {v(vCA+i)}, 2, {v(t+i)}
        ds_add_rtn_u32 {v(vRK+i)}, {v(vCA+i)}, {v(t+8)} offset:{CNT}""")
    for i in range(4):
        e(f"v_mad_i32_i24 {v(t+i)}, {v(t+i)}, {s(sT0)}, {v(vDST+i)}")
        e(f"v_lshl_or_b32 {v(vREC+2*i)}, {v(t+i)}, 17, {v(vSRC+i)}")
        if i & 1:
            e(f"v_lshrrev_b32 {v(t+4)}, 16, {v(vEA+i//2)}")
        else:
            e(f"v_and_b32 {v(t+4)}, 0xffff, {v(vEA+i//2)}")
        e(f"v_lshl_or_b32 {v(vREC+2*i+1)}, {v(t+i)}, 20, {v(t+4)}")
    e("s_branch K1_rank_done")
    e.label("K1_side")
    e(f"""s_add_u32 {s(sT0)}, {s(sNB)}, {NB}
    s_min_u32 {s(sT0)}, {s(sT0)}, {N}""")
    addptr(e, sP, pWS, WS_PS)
    for i in range(8):
        e(f"v_mov_b32 {v(t+8+i)}, 0")
    e(f"""v_add_u32 {v(t)}, {s(sNB)}, {v(vL)}
    v_add_u32 {v(t+1)}, 64, {v(t)}
    v_mul_u32_u24 {v(t+2)}, 6, {v(t)}
    v_lshlrev_b32 {v(t+3)}, 4, {v(t)}
    v_cmp_gt_u32 vcc, {s(sT0)}, {v(t)}
    v_cmp_gt_u32 {s(sC2,2)}, {s(sT0)}, {v(t+1)}
    s_mov_b64 exec, vcc""")
    for i in range(3):
        e(f"global_load_ushort {v(t+9+i)}, {v(t+2)}, {s(pPOS,2)} offset:{2*i}")
    e(f"""s_mov_b64 exec, {s(sC2,2)}
    s_cbranch_execz K1_ps1""")
    for i in range(3):
        e(f"global_load_ushort {v(t+13+i)}, {v(t+2)}, {s(pPOS,2)} offset:{384+2*i}")
    e.label("K1_ps1")
    e(f"""s_mov_b64 exec, -1
    s_cmp_ge_u32 s2, 96
    s_cbranch_scc1 K1_nowf
    s_and_b32 {s(sT0)}, s2, 7
    s_bfe_u32 {s(sT1)}, s2, {hex((2 << 16) | 3)}
    s_lshl_b32 {s(sT1)}, {s(sT1)}, 6
    v_and_b32 {v(t+4)}, 31, {v(vL)}
    v_lshl_add_u32 {v(t+4)}, {v(t+4)}, 1, {s(sT1)}
    v_lshrrev_b32 {v(t+5)}, 5, {v(vL)}
    s_cmp_ge_u32 s2, 64
    s_cbranch_scc1 K1_wf2
    s_cmp_ge_u32 s2, 32
    s_cselect_b32 {s(sP+2)}, {s(pWH)}, {s(pWE)}
    s_cselect_b32 {s(sP+3)}, {s(pWH+1)}, {s(pWE+1)}
    s_lshl_b32 {s(sT0)}, {s(sT0)}, 12
    v_lshl_add_u32 {v(t+4)}, {v(t+5)}, 11, {v(t+4)}
    v_add_u32 {v(t+4)}, {s(sT0)}, {v(t+4)}""")
    for j in range(8):
        e(f"global_load_ushort {v(t+16+j//2+4*(j&1))}, {v(t+4)}, {s(sP+2,2)} offset:{256*j}")
    e("s_branch K1_wfst")
    e.label("K1_wf2")
    e(f"""s_lshr_b32 {s(sT1)}, {s(sT0)}, 2
    s_lshl_b32 {s(sT1)}, {s(sT1)}, 14
    s_and_b32 {s(sT0)}, {s(sT0)}, 3
    s_lshl_b32 {s(sT0)}, {s(sT0)}, 11
    s_add_u32 {s(sT0)}, {s(sT0)}, {s(sT1)}
    s_add_u32 {s(sT0)}, {s(sT0)}, {128*256}
    v_lshl_add_u32 {v(t+4)}, {v(t+5)}, 10, {v(t+4)}
    v_add_u32 {v(t+4)}, {s(sT0)}, {v(t+4)}
    v_add_u32 {v(t+5)}, 8192, {v(t+4)}""")
    for j in range(8):
        e(f"global_load_ushort {v(t+16+j//2+4*(j&1))}, {v(t+4+(j&1))}, {s(pWH,2)} offset:{256*(j//2)}")
    e.label("K1_wfst")
    e(f"""s_lshl_b32 {s(sT0)}, s2, 10
    s_add_u32 {s(sT0)}, {s(sT0)}, {hex(WS_WF)}
    v_lshl_add_u32 {v(t+4)}, {v(vL)}, 4, {s(sT0)}
    s_waitcnt vmcnt(0)""")
    for j in range(4):
        e(f"v_lshl_or_b32 {v(t+16+j)}, {v(t+20+j)}, 16, {v(t+16+j)}")
    e(f"global_store_dwordx4 {v(t+4)}, {v(t+16,4)}, {s(pWS,2)}")
    e.label("K1_nowf")
    e("s_waitcnt vmcnt(0)")
    for i in (1, 2, 3, 5, 6, 7):
        e(f"v_lshlrev_b32 {v(t+8+i)}, 16, {v(t+8+i)}")
    e(f"""global_store_dwordx4 {v(t+3)}, {v(t+8,4)}, {s(sP,2)}
    s_mov_b64 exec, {s(sC2,2)}
    s_cbranch_execz K1_rank_done
    global_store_dwordx4 {v(t+3)}, {v(t+12,4)}, {s(sP,2)} offset:1024""")
    e.label("K1_rank_done")
    e("s_mov_b64 exec, -1")
    aW, aH = t + 20, t + 21
    e(f"""s_and_b32 {s(sT0)}, {s(sW)}, 3
    s_lshr_b32 {s(sT1)}, {s(sW)}, 2
    v_bfe_u32 {v(t)}, {v(vL)}, 2, 2
    v_lshrrev_b32 {v(t+1)}, 5, {v(vL)}
    v_lshl_add_u32 {v(t+2)}, {v(t+1)}, 3, {v(t)}
    v_lshlrev_b32 {v(aW)}, 8, {v(t+2)}
    v_xor_b32 {v(t)}, {s(sT0)}, {v(t)}
    v_lshl_add_u32 {v(aW)}, {v(t)}, 6, {v(aW)}
    v_bfe_u32 {v(t)}, {v(vL)}, 4, 1
    v_lshl_add_u32 {v(aW)}, {v(t)}, 5, {v(aW)}
    v_and_b32 {v(t)}, 3, {v(vL)}
    v_lshl_add_u32 {v(aW)}, {v(t)}, 3, {v(aW)}
    v_add_u32 {v(aW)}, {W2}, {v(aW)}
    v_and_b32 {v(t)}, 31, {v(vL)}
    v_and_b32 {v(t+2)}, 15, {v(vL)}
    v_xor_b32 {v(t+2)}, {v(t+2)}, {v(t+1)}
    v_lshlrev_b32 {v(t+2)}, 4, {v(t+2)}
    v_lshl_add_u32 {v(aH)}, {v(t)}, 8, {v(t+2)}
    s_lshl_b32 {s(sC2)}, {s(sT1)}, 14
    v_add_u32 {v(aH)}, {s(sC2)}, {v(aH)}""")
    aO = t + 22
    e(f"""v_mul_u32_u24 {v(aO)}, 272, {v(t)}
    v_lshl_add_u32 {v(aO)}, {v(t+1)}, 3, {v(aO)}
    s_mul_i32 {s(sC2)}, {s(sT1)}, {64*272}
    s_lshl_b32 {s(sT0)}, {s(sT0)}, 6
    s_add_u32 {s(sC2)}, {s(sC2)}, {s(sT0)}
    s_add_u32 {s(sC2)}, {s(sC2)}, {OUT}
    v_add_u32 {v(aO)}, {s(sC2)}, {v(aO)}
    v_lshlrev_b32 {v(t+10)}, 4, {v(vL)}
    s_waitcnt vmcnt(0) lgkmcnt(0)
    s_barrier""")
    prof("bar2")
    c = t + 4
    e(f"ds_read_b128 {v(c,4)}, {v(t+10)} offset:{CNT}")
    for sidx in range(8):
        for u in range(2):
            e(f"ds_read_b64_tr_b16 {v(vWF+4*sidx+2*u,2)}, {v(aW)} offset:{(16*sidx+4*u)*256}")
    e(f"""s_waitcnt lgkmcnt(14)
    v_add_u32 {v(t+12)}, {v(c)}, {v(c+1)}
    v_add3_u32 {v(t+11)}, {v(t+12)}, {v(c+2)}, {v(c+3)}
    v_mov_b32 {v(t+9)}, {v(t+11)}""")
    scan64(e, t + 9)
    e(f"""v_sub_u32 {v(t+12)}, {v(t+9)}, {v(t+11)}
    v_add_u32 {v(t+13)}, {v(t+12)}, {v(c)}
    v_add_u32 {v(t+14)}, {v(t+13)}, {v(c+1)}
    v_add_u32 {v(t+15)}, {v(t+14)}, {v(c+2)}
    ds_write_b128 {v(t+10)}, {v(t+12,4)} offset:{BASE}
    s_cmp_lg_u32 {s(sW)}, 7
    s_cbranch_scc1 K1_notab""")
    for i in range(4):
        e(f"v_lshl_or_b32 {v(t+16+i)}, {v(c+i)}, 16, {v(t+12+i)}")
    e(f"""s_lshl_b32 {s(sT0)}, s2, 10
    s_add_u32 {s(sT0)}, {s(sT0)}, {hex(WS_TAB)}
    v_add_u32 {v(t+11)}, {s(sT0)}, {v(t+10)}
    global_store_dwordx4 {v(t+11)}, {v(t+16,4)}, {s(pWS,2)}""")
    e.label("K1_notab")
    e(f"s_mov_b64 exec, {s(sEM,2)}")
    for i in range(4):
        e(f"ds_read_b32 {v(t+i)}, {v(vCA+i)} offset:{BASE}")
    e("s_mov_b64 exec, -1")
    for sidx in range(8):
        if sidx:
            e(f"v_xor_b32 {v(t+23)}, {32*sidx}, {v(aH)}")
        a = aH if sidx == 0 else t + 23
        e(f"ds_read_b128 {v(vHF+4*sidx,4)}, {v(a)} offset:{HT}")
        e(f"ds_read_b128 {v(vHF+32+4*sidx,4)}, {v(a)} offset:{HT+8192}")
    e(f"""s_waitcnt lgkmcnt(14)
    s_mov_b64 exec, {s(sEM,2)}""")
    for i in range(4):
        e(f"v_add_u32 {v(t+i)}, {v(t+i)}, {v(vRK+i)}")
        e(f"ds_write_b64 {v(t+i)}, {v(vREC+2*i,2)} offset:{RECS}")
    e("s_mov_b64 exec, -1")
    e("s_waitcnt lgkmcnt(0)")
    for sidx in range(8):
        for r in range(2):
            a = vACC + 16 * r
            e(f"{MFMA} {v(a,16)}, {v(vWF+4*sidx,4)}, {v(vHF+32*r+4*sidx,4)}, {v(a,16) if sidx else 0}")
    e("s_nop 10")
    for r in range(2):
        a = vACC + 16 * r
        for k in range(8):
            e(f"v_pk_mul_f32 {v(a+2*k,2)}, {v(a+2*k,2)}, {s(sC,2)}")
        for k in range(8):
            e(f"v_cvt_pk_bf16_f32 {v(vHF+8*r+k)}, {v(a+2*k)}, {v(a+2*k+1)}")
        for j in range(4):
            e(f"ds_write_b64 {v(aO)}, {v(vHF+8*r+2*j,2)} offset:{r*32*272 + 16*j}")
    e(f"""v_lshlrev_b32 {v(t)}, 4, v0
    v_lshrrev_b32 {v(t+1)}, 4, v0
    v_lshl_add_u32 {v(t+1)}, {v(t+1)}, 4, {v(t)}
    v_add_u32 {v(t+1)}, {OUT}, {v(t+1)}
    s_mul_i32 {s(sT0)}, s2, {CH*8}
    s_add_u32 {s(sT0)}, {s(sT0)}, {hex(WS_REC)}
    v_add_u32 {v(t+2)}, {s(sT0)}, {v(t)}
    v_add_u32 {v(t+3)}, 8192, {v(t+2)}
    s_lshl_b32 {s(sT0)}, {s(sNB)}, 8
    v_add_u32 {v(t+4)}, {s(sT0)}, {v(t)}
    v_add_u32 {v(t+5)}, 8192, {v(t+4)}
    v_add_u32 {v(t+6)}, 16384, {v(t+4)}
    v_add_u32 {v(t+7)}, 24576, {v(t+4)}
    s_movk_i32 {s(sT0)}, {CH*8//16 - 512}
    v_cmp_gt_u32 vcc, {s(sT0)}, v0
    s_waitcnt lgkmcnt(0)
    s_barrier""")
    prof("bar3")
    d = vWF
    e(f"ds_read_b128 {v(d,4)}, {v(t)} offset:{RECS}")
    e(f"ds_read_b128 {v(d+4,4)}, {v(t)} offset:{RECS+8192}")
    for k in range(4):
        e(f"ds_read_b128 {v(d+8+4*k,4)}, {v(t+1)} offset:{8704*k}")
    e(f"""s_waitcnt lgkmcnt(5)
    global_store_dwordx4 {v(t+2)}, {v(d,4)}, {s(pWS,2)}""")
    for k in range(3):
        e(f"s_waitcnt lgkmcnt({3-k})")
        e(f"global_store_dwordx4 {v(t+4+k)}, {v(d+8+4*k,4)}, {s(pWS,2)}")
    e(f"""s_mov_b64 exec, vcc
    s_cbranch_execz K1_fin
    global_store_dwordx4 {v(t+3)}, {v(d+4,4)}, {s(pWS,2)}
    s_cmp_lg_u32 {s(sW)}, 0
    s_cbranch_scc1 K1_fin
    s_mov_b32 exec_hi, 0
    s_waitcnt lgkmcnt(0)
    global_store_dwordx4 {v(t+7)}, {v(d+20,4)}, {s(pWS,2)}""")
    e.label("K1_fin")
    if OPT["prof"]:
        e("s_mov_b64 exec, -1")
        prof("stores")
        e("s_waitcnt vmcnt(0)")
        prof("drained")
        prof.store(pWS, sW, 0, t + 10)
    e.label("K1_end")
    e("s_endpgm")
    return e, lds, 192, prof.names


def k2():
    e = Asm()
    CAP = 2048
    L = Alloc(0, 160 * 1024)
    CNT = L(512, 16)
    BASE = L(512, 16)
    FLAG = L(16, 16)
    HT = L(25600, 256)
    STG = L(8 * 4096, 256)
    PLANE = 106 * 64
    AT = L(4 * PLANE, 16)
    Z0 = L(0, 16)
    MT = L(105 * 272, 16)
    PACC = L(105 * 16, 16)
    IMG = L(8 * 2560, 16)
    Z1 = L(0, 16)
    LIST = L((CAP + 64) * 8, 16)
    PD = L(2048, 16)
    lds = L.p
    assert Z1 - Z0 <= 7 * 8192 and Z0 + 7 * 8192 <= PD

    S = Alloc(4, 102)
    pH = S(2, 4); pPOS = S(2); pEA = S(2); pSRC = S(2); pDST = S(2); pWE = S(2); pWX = S(2); pWH = S(2)
    pOUT = S(2, 4); pDBG = S(2); pWS = S(2)
    rH = S(4, 4); rREC = S(4, 4); rBT = S(4, 4); rPSI = S(4, 4)
    rPS = rREC
    sW = S(); sNB = S(); sOff = S(); sLim = S(); sFirst = S(); sT0 = S(); sT1 = S(); sT2 = S()
    sC = S(2, 2); sM = S(2, 2); sWF = S(2, 2)
    sP8 = S(); sEnd8 = S(); sBN = S(); sBC = S(); sBP = S(); sSTG = S(); s128 = S(); sMore = S()
    sMK = pPOS
    masks = [pPOS, pEA, pSRC, pDST] + [S(2, 2) for _ in range(8)]
    prof = Prof(e, S(18, 2), 16) if OPT["prof"] else Prof(e, 0, 0)

    V = Alloc(0, 256)
    ACC = V(64)
    X = V(16); T = V(16)
    BR = V(16); AO = V(4); SO = V(4); S4 = V(8)
    MP = V(8); ID = V(8)
    IDX = V(8); G = V(2); REC = V(2); PSV = V(2); PDV = V(2); WX = V(8)
    aBR = V(4); aSO = V(); aS4 = V(); aAO = V(); aAOc = V(); vH32 = V(); aLP = V(); aLQ = V()
    aIM = V(); aIB = V(); aIBc = V(); aXT = V(); aPDc = V(); vD = V(); vP = V(); vONE = V(); vZ = V()
    aFMc = V(); aFPc = V(); aF = vD; vL = V()
    vTID = MP
    WH1 = V(32, 2); WH2 = V(32, 2)
    nvgpr = V.p

    R0 = ACC
    CA = ACC + 24
    RK = ACC + 36
    t = ACC + 48
    W1 = WH1
    HF0, HF1 = X, BR
    GA = WH2

    e.label("egnn_main_kernel")
    e(f"""s_cmp_ge_u32 s2, {NWG}
    s_cbranch_scc1 K2_end
    s_load_dwordx16 {s(pH,16)}, s[0:1], 0
    s_load_dwordx4 {s(pOUT,4)}, s[0:1], 64
    s_load_dwordx2 {s(pWS,2)}, s[0:1], 80""")
    prof("start")
    e(f"""v_and_b32 {v(vL)}, 63, v0
    v_lshrrev_b32 {v(t)}, 6, v0
    s_mul_i32 {s(sNB)}, s2, {NB}
    v_readfirstlane_b32 {s(sW)}, {v(t)}
    s_mov_b32 {s(sOff)}, 0
    s_mov_b32 {s(sLim)}, {24*8}
    s_mov_b32 {s(sFirst)}, 1
    s_mov_b32 {s(sC)}, {hex(NEG_LOG2E)}
    s_mov_b32 {s(sC+1)}, {hex(NEG_LOG2E)}
    s_movk_i32 {s(s128)}, 128
    s_waitcnt lgkmcnt(0)""")
    srd(e, rREC, s(pWS), s(pWS + 1), hex(WS_PROF))
    e.label("K2_round")
    vTAB = t + 15
    e(f"""v_lshl_add_u32 {v(vTID)}, {s(sW)}, 6, {v(vL)}
    v_lshrrev_b32 {v(t)}, 1, {v(vTID)}
    s_lshl_b32 {s(sT0)}, s2, 2
    s_add_u32 {s(sT0)}, {s(sT0)}, {hex(WS_TAB)}
    v_lshl_add_u32 {v(t+1)}, {v(t)}, 10, {s(sT0)}
    global_load_dword {v(vTAB)}, {v(t+1)}, {s(pWS,2)}
    v_mov_b32 {v(vZ)}, 0
    v_and_b32 {v(t+1)}, 0x1fc, {v(vTID)}
    ds_write_b32 {v(t+1)}, {v(vZ)} offset:{CNT}
    ds_write_b32 {v(vZ)}, {v(vZ)} offset:{FLAG}
    s_cmp_eq_u32 {s(sFirst)}, 0
    s_cbranch_scc1 K2_nf1""")
    srd(e, rH, s(pH), s(pH + 1), N * 256)
    e(f"""v_lshrrev_b32 {v(t+2)}, 4, {v(vTID)}
    v_xor_b32 {v(t+3)}, {v(t+2)}, {v(vTID)}
    v_and_b32 {v(t+3)}, 15, {v(t+3)}
    v_add_u32 {v(t+2)}, {s(sNB)}, {v(t+2)}
    v_lshlrev_b32 {v(t+2)}, 8, {v(t+2)}
    v_lshl_add_u32 {v(t+2)}, {v(t+3)}, 4, {v(t+2)}
    s_lshl_b32 {s(sT0)}, {s(sW)}, 10""")
    for k in range(3):
        e(f"""s_add_u32 m0, {s(sT0)}, {HT + 8192*k}
        v_add_u32 {v(t+3)}, {8192*k}, {v(t+2)}
        buffer_load_dwordx4 {v(t+3)}, {s(rH,4)}, 0 offen lds""")
    e(f"""s_and_b32 {s(sT1)}, {s(sW)}, 3
    s_lshl_b32 {s(sT1)}, {s(sT1)}, 13
    s_add_u32 {s(sT1)}, {s(sT1)}, {hex(WS_WF)}
    s_add_u32 {s(sWF)}, {s(pWS)}, {s(sT1)}
    s_addc_u32 {s(sWF+1)}, {s(pWS+1)}, 0
    v_lshlrev_b32 {v(t+4)}, 4, {v(vL)}
    v_add_u32 {v(t+5)}, 4096, {v(t+4)}""")
    for k in range(8):
        e(f"global_load_dwordx4 {v(W1+4*k,4)}, {v(t+4+k//4)}, {s(sWF,2)} offset:{1024*(k%4)}")
    e(f"""v_and_b32 {v(t+6)}, 31, {v(vL)}
    v_lshlrev_b32 {v(t+7)}, 1, {v(t+6)}""")
    for k in range(4):
        e(f"global_load_ushort {v(WX+2*k)}, {v(t+7)}, {s(pWX,2)} offset:{64*k}")
    e(f"""s_cmp_lg_u32 {s(sW)}, 0
    s_cbranch_scc1 K2_j1
    s_mov_b32 m0, {HT + 8192*3}
    v_add_u32 {v(t+3)}, {8192*3}, {v(t+2)}
    buffer_load_dwordx4 {v(t+3)}, {s(rH,4)}, 0 offen lds
    s_branch K2_j3""")
    e.label("K2_j1")
    e(f"""s_cmp_gt_u32 {s(sW)}, 2
    s_cbranch_scc1 K2_j2
    s_add_u32 m0, {s(sT0)}, {PD - 1024}
    s_lshl_b32 {s(sT1)}, {s(sNB)}, 4
    s_add_u32 {s(sT1)}, {s(sT1)}, {hex(WS_PS - 1024)}
    v_lshl_add_u32 {v(t+3)}, {v(vTID)}, 4, {s(sT1)}
    buffer_load_dwordx4 {v(t+3)}, {s(rPS,4)}, 0 offen lds
    s_branch K2_j3""")
    e.label("K2_j2")
    e(f"""s_cmp_lt_u32 {s(sW)}, 6
    s_cbranch_scc1 K2_j3
    v_lshlrev_b32 {v(t+3)}, 1, {v(vTID)}
    v_add_u32 {v(t+3)}, {256*256 - 768}, {v(t+3)}
    global_load_ushort {v(PSV)}, {v(t+3)}, {s(pWE,2)}
    global_load_ushort {v(PSV+1)}, {v(t+3)}, {s(pWE,2)} offset:256""")
    e.label("K2_j3")
    for k in range(4):
        e(f"v_mov_b32 {v(t+8+k)}, 0")
    e(f"""v_lshlrev_b32 {v(t+3)}, 4, {v(vTID)}
    v_add_u32 {v(t+3)}, {Z0}, {v(t+3)}""")
    for k in range(7):
        e(f"ds_write_b128 {v(t+3)}, {v(t+8,4)} offset:{8192*k}")
    srd(e, rBT, s(pWS), s(pWS + 1), N, stride=256)
    addptr(e, rPSI, pWS, WS_PS)
    e(f"""s_or_b32 {s(rPSI+1)}, {s(rPSI+1)}, {hex(16 << 16)}
    s_mov_b32 {s(rPSI+2)}, {N}
    s_mov_b32 {s(rPSI+3)}, 0x20000""")
    vE, vH = t + 6, t + 7
    e(f"""v_lshrrev_b32 {v(vH)}, 5, {v(vL)}
    s_mul_i32 {s(sT1)}, {s(sW)}, 2560
    s_add_u32 {s(sT1)}, {s(sT1)}, {IMG}
    s_lshl_b32 {s(sSTG)}, {s(sW)}, 12
    s_add_u32 {s(sSTG)}, {s(sSTG)}, {STG}
    v_mul_u32_u24 {v(t+2)}, 80, {v(vE)}
    v_add_u32 {v(t+2)}, {s(sT1)}, {v(t+2)}
    v_lshl_add_u32 {v(aIBc)}, {v(vH)}, 5, {v(t+2)}
    v_lshl_add_u32 {v(aSO)}, {v(vH)}, 6, {v(t+2)}
    v_lshl_add_u32 {v(aXT)}, {v(vH)}, 3, {v(t+2)}
    v_lshlrev_b32 {v(G+1)}, 3, {v(vH)}
    v_add_u32 {v(aPDc)}, {PD}, {v(G+1)}
    v_mov_b32 {v(vONE)}, 0x3f80
    v_bfe_u32 {v(t+2)}, {v(vL)}, 2, 2
    v_bfe_u32 {v(t+3)}, {v(vL)}, 4, 1
    v_and_b32 {v(t+4)}, 3, {v(vL)}
    v_lshlrev_b32 {v(t+4)}, 3, {v(t+4)}
    v_lshl_add_u32 {v(t+4)}, {v(t+3)}, 5, {v(t+4)}
    v_lshl_add_u32 {v(t+5)}, {v(vH)}, 2, {v(t+2)}
    v_mul_u32_u24 {v(t+5)}, 80, {v(t+5)}
    v_add3_u32 {v(aS4)}, {v(t+5)}, {v(t+4)}, {s(sT1)}
    v_mul_u32_u24 {v(t+5)}, {NB}, {v(vH)}
    v_add_u32 {v(t+5)}, {v(t+5)}, {v(t+2)}
    v_lshl_add_u32 {v(t+5)}, {v(t+5)}, 6, {v(t+4)}
    v_add_u32 {v(aAOc)}, {AT}, {v(t+5)}
    v_lshlrev_b32 {v(vH32)}, 5, {v(vH)}
    v_sub_u32 {v(vH32)}, 32, {v(vH32)}""")
    e(f"""v_bfe_u32 {v(t+2)}, {v(vL)}, 1, 3
    v_xor_b32 {v(t+2)}, {v(t+2)}, {v(vH)}
    v_lshlrev_b32 {v(t+2)}, 4, {v(t+2)}
    v_lshl_add_u32 {v(t+2)}, {v(vE)}, 7, {v(t+2)}
    v_add_u32 {v(aBR)}, {s(sSTG)}, {v(t+2)}""")
    for k in range(1, 4):
        e(f"v_xor_b32 {v(aBR+k)}, {32*k}, {v(aBR)}")
    e(f"""v_lshrrev_b32 {v(t+2)}, 4, {v(vL)}
    v_xor_b32 {v(t+2)}, {v(t+2)}, {v(vL)}
    v_and_b32 {v(t+2)}, 7, {v(t+2)}
    v_lshlrev_b32 {v(IDX+1)}, 4, {v(t+2)}
    v_xor_b32 {v(IDX+3)}, 64, {v(IDX+1)}
    v_mov_b32 {v(IDX+5)}, {v(IDX+1)}
    v_mov_b32 {v(IDX+7)}, {v(IDX+3)}""")
    e(f"""v_mul_u32_u24 {v(t+2)}, {4*272}, {v(vH)}
    v_lshl_add_u32 {v(t+2)}, {v(vE)}, 2, {v(t+2)}
    v_add_u32 {v(aFMc)}, {MT}, {v(t+2)}
    v_lshrrev_b32 {v(t+2)}, 3, {v(vL)}
    v_lshlrev_b32 {v(t+2)}, 4, {v(t+2)}
    v_add_u32 {v(aFPc)}, {PACC}, {v(t+2)}""")
    e(f"""v_lshlrev_b32 {v(t+2)}, 3, {v(vH)}
    v_sub_u32 {v(t+2)}, {v(vE)}, {v(t+2)}
    v_and_b32 {v(t+3)}, 1, {v(vL)}
    v_lshlrev_b32 {v(t+3)}, 4, {v(t+3)}
    v_lshlrev_b32 {v(t+3)}, {v(t+3)}, {v(vONE)}
    v_ashrrev_i32 {v(t+2)}, 1, {v(t+2)}""")
    for k in range(8):
        e(f"""v_cmp_eq_u32 vcc, {8*(k//4) + k%4}, {v(t+2)}
        s_nop 1
        v_cndmask_b32 {v(ID+k)}, 0, {v(t+3)}, vcc""")
    e("s_waitcnt vmcnt(15)")
    e("s_branch K2_nf2")
    e.label("K2_nf1")
    e("s_waitcnt vmcnt(0)")
    e.label("K2_nf2")
    prof("tab")
    vLC, vRA = t + 2, t + 3
    e(f"""v_lshrrev_b32 {v(vLC)}, 16, {v(vTAB)}
    v_subrev_u32 {v(vLC)}, {s(sOff)}, {v(vLC)}
    v_cmp_lt_i32 vcc, {s(sLim)}, {v(vLC)}
    v_min_i32 {v(vLC)}, {s(sLim)}, {v(vLC)}
    s_mov_b64 {s(sM,2)}, vcc
    v_and_b32 {v(t+4)}, 1, {v(vTID)}
    v_lshlrev_b32 {v(t+4)}, 4, {v(t+4)}
    v_sub_u32 {v(vLC)}, {v(vLC)}, {v(t+4)}
    v_and_b32 {v(vRA)}, 0xffff, {v(vTAB)}
    v_mul_u32_u24 {v(t+5)}, {CH*8}, {v(t)}
    s_add_u32 {s(sT0)}, {s(sOff)}, {hex(WS_REC)}
    v_add3_u32 {v(vRA)}, {v(vRA)}, {v(t+5)}, {v(t+4)}
    v_add_u32 {v(vRA)}, {s(sT0)}, {v(vRA)}
    v_mov_b32 {v(t+5)}, 0x7ffffff0""")
    for j in range(6):
        e(f"s_movk_i32 {s(sT0)}, {32*j}")
        e(f"v_cmp_lt_i32 {s(masks[2*j],2)}, {s(sT0)}, {v(vLC)}")
        e(f"s_movk_i32 {s(sT1)}, {32*j+8}")
        e(f"v_cmp_lt_i32 {s(masks[2*j+1],2)}, {s(sT1)}, {v(vLC)}")
        e(f"v_cndmask_b32 {v(t+8+j)}, {v(t+5)}, {v(vRA)}, {s(masks[2*j],2)}")
        e(f"buffer_load_dwordx4 {v(R0+4*j,4)}, {v(t+8+j)}, {s(rREC,4)}, 0 offen offset:{32*j}")
    e(f"""s_waitcnt vmcnt(6) lgkmcnt(0)
    s_barrier""")
    prof("bar1")
    e(f"""s_mov_b64 exec, {s(sM,2)}
    ds_write_b32 {v(vZ)}, {v(vONE)} offset:{FLAG}
    s_mov_b64 exec, -1
    s_cmp_eq_u32 {s(sFirst)}, 0
    s_cbranch_scc1 K2_nf3""")
    aH = t + 4

    def h_addr(dst, tmp, rot):
        e(f"""v_and_b32 {v(tmp)}, 15, {v(vL)}
        v_lshrrev_b32 {v(dst)}, 5, {v(vL)}
        v_xor_b32 {v(tmp)}, {v(tmp)}, {v(dst)}
        v_lshlrev_b32 {v(tmp)}, 4, {v(tmp)}
        v_and_b32 {v(dst)}, 31, {v(vL)}
        v_lshl_add_u32 {v(dst)}, {v(dst)}, 8, {v(tmp)}
        s_lshr_b32 {s(sT0)}, {s(sW)}, 2
        s_lshl_b32 {s(sT0)}, {s(sT0)}, 14""")
        if rot:
            e(f"""s_and_b32 {s(sT1)}, {s(sW)}, 3
            s_lshl_b32 {s(sT1)}, {s(sT1)}, 6
            s_or_b32 {s(sT0)}, {s(sT0)}, {s(sT1)}""")
        e(f"v_xor_b32 {v(dst)}, {s(sT0)}, {v(dst)}")

    def h_frags(a, tmp):
        for k in range(8):
            if k:
                e(f"v_xor_b32 {v(tmp)}, {32*k}, {v(a)}")
            x = tmp if k else a
            e(f"ds_read_b128 {v(HF0+4*k,4)}, {v(x)} offset:{HT}")
            e(f"ds_read_b128 {v(HF1+4*k,4)}, {v(x)} offset:{HT+8192}")

    h_addr(aH, t + 5, False)
    h_frags(aH, t + 5)
    aA = t + 5
    e(f"""s_and_b32 {s(sT1)}, {s(sW)}, 3
    s_mul_i32 {s(sT1)}, {s(sT1)}, {PLANE}
    s_lshr_b32 {s(sT0)}, {s(sW)}, 2
    s_lshl_b32 {s(sT0)}, {s(sT0)}, 12
    s_add_u32 {s(sT1)}, {s(sT1)}, {s(sT0)}
    s_add_u32 {s(sT1)}, {s(sT1)}, {AT}
    v_lshlrev_b32 {v(aA)}, 1, {v(vE)}
    v_lshl_add_u32 {v(aA)}, {v(vH)}, 8, {v(aA)}
    v_add_u32 {v(aA)}, {s(sT1)}, {v(aA)}""")
    for k in range(8):
        e(f"s_waitcnt lgkmcnt({14-2*k})")
        for r in range(2):
            a = GA + 16 * r
            e(f"{MFMA} {v(a,16)}, {v((HF0,HF1)[r]+4*k,4)}, {v(W1+4*k,4)}, {v(a,16) if k else 0}")
    e(f"""s_cmp_lt_u32 {s(sW)}, 6
    s_cbranch_scc1 K2_j4
    v_lshlrev_b32 {v(PSV)}, 16, {v(PSV)}
    v_lshlrev_b32 {v(PSV+1)}, 16, {v(PSV+1)}
    v_mul_f32 {v(PSV)}, {s(sC)}, {v(PSV)}
    v_mul_f32 {v(PSV+1)}, {s(sC)}, {v(PSV+1)}
    v_cvt_pk_bf16_f32 {v(PDV)}, {v(PSV)}, {v(PSV+1)}
    v_lshlrev_b32 {v(REC)}, 16, {v(PDV)}
    v_and_b32 {v(REC+1)}, 0xffff0000, {v(PDV)}
    v_sub_f32 {v(PSV)}, {v(PSV)}, {v(REC)}
    v_sub_f32 {v(PSV+1)}, {v(PSV+1)}, {v(REC+1)}
    v_cvt_pk_bf16_f32 {v(PDV+1)}, {v(PSV)}, {v(PSV+1)}
    v_bfe_u32 {v(REC)}, {v(vTID)}, 5, 2
    v_mul_u32_u24 {v(REC)}, {PLANE}, {v(REC)}
    v_lshl_add_u32 {v(REC)}, {v(vE)}, 1, {v(REC)}
    v_add_u32 {v(REC)}, {AT + NB*64}, {v(REC)}
    ds_write_b16 {v(REC)}, {v(PDV)}
    ds_write_b16 {v(REC)}, {v(PDV+1)} offset:64
    ds_write_b16_d16_hi {v(REC)}, {v(PDV)} offset:128
    ds_write_b16 {v(REC)}, {v(vZ)} offset:192
    ds_write_b16 {v(REC)}, {v(PDV)} offset:256
    ds_write_b16 {v(REC)}, {v(PDV+1)} offset:320
    ds_write_b16_d16_hi {v(REC)}, {v(PDV+1)} offset:384
    ds_write_b16 {v(REC)}, {v(vZ)} offset:448""")
    e.label("K2_j4")
    for k in range(4):
        e(f"v_lshlrev_b32 {v(WX+2*k+1)}, 16, {v(WX+2*k)}")
        e(f"v_lshlrev_b32 {v(WX+2*k)}, 16, {v(WX+2*k)}")
    e("s_nop 0")

    def a_out(r, npairs):
        a = GA + 16 * r
        for k in range(npairs):
            e(f"v_pk_mul_f32 {v(a+2*k,2)}, {v(a+2*k,2)}, {s(sC,2)}")
        for k in range(npairs):
            e(f"v_cvt_pk_bf16_f32 {v(a+2*k)}, {v(a+2*k)}, {v(a+2*k+1)}")
        for k in range(npairs):
            row = 32 * r + 8 * (k // 2) + 2 * (k % 2)
            e(f"ds_write_b16 {v(aA)}, {v(a+2*k)} offset:{row*64}")
            e(f"ds_write_b16_d16_hi {v(aA)}, {v(a+2*k)} offset:{row*64+64}")

    a_out(0, 8)
    e(f"""s_cmp_ge_u32 {s(sW)}, 4
    s_cbranch_scc1 K2_j5""")
    a_out(1, 8)
    e("s_branch K2_nf3")
    e.label("K2_j5")
    e("s_mov_b32 exec_hi, 0")
    a_out(1, 1)
    e("s_mov_b64 exec, -1")
    e.label("K2_nf3")
    prof("agemm")
    e(f"""v_mov_b32 {v(t+4)}, 8
    s_waitcnt vmcnt(0)""")
    prof("recs")
    for k in range(12):
        e(f"s_mov_b64 exec, {s(masks[k],2)}")
        if k % 2 == 0:
            e("s_cbranch_execz K2_rk")
        e(f"""v_lshrrev_b32 {v(CA+k)}, 18, {v(R0+2*k+1)}
        ds_add_rtn_u32 {v(RK+k)}, {v(CA+k)}, {v(t+4)} offset:{CNT}""")
    e.label("K2_rk")
    e(f"""s_mov_b64 exec, -1
    v_lshlrev_b32 {v(t+5)}, 3, {v(vL)}
    s_waitcnt lgkmcnt(0)
    s_barrier""")
    prof("bar2")
    e(f"""ds_read_b64 {v(t+8,2)}, {v(t+5)} offset:{CNT}
    ds_read_b32 {v(t+12)}, {v(vZ)} offset:{FLAG}
    s_waitcnt lgkmcnt(0)
    v_add_u32 {v(t+9)}, {v(t+8)}, {v(t+9)}
    v_mov_b32 {v(t+13)}, {v(t+9)}
    v_readfirstlane_b32 {s(sMore)}, {v(t+12)}""")
    scan64(e, t + 13)
    e(f"""v_sub_u32 {v(t+10)}, {v(t+13)}, {v(t+9)}
    v_readlane_b32 {s(sEnd8)}, {v(t+13)}, 63
    v_add_u32 {v(t+10)}, {LIST}, {v(t+10)}
    v_add_u32 {v(t+11)}, {v(t+10)}, {v(t+8)}
    ds_write_b64 {v(t+5)}, {v(t+10,2)} offset:{BASE}
    s_mov_b32 {s(sFirst)}, 0
    s_cmp_le_u32 {s(sEnd8)}, {CAP*8}
    s_cbranch_scc1 K2_fits
    s_cmp_eq_u32 {s(sLim)}, 64
    s_cbranch_scc1 K2_fits
    s_movk_i32 {s(sLim)}, 64
    s_waitcnt lgkmcnt(0)
    s_barrier
    s_branch K2_round""")
    e.label("K2_fits")
    for k in range(12):
        e(f"s_mov_b64 exec, {s(masks[k],2)}")
        if k % 2 == 0:
            e("s_cbranch_execz K2_pl1")
        e(f"ds_read_b32 {v(CA+k)}, {v(CA+k)} offset:{BASE}")
    e.label("K2_pl1")
    e(f"""s_mov_b64 exec, -1
    v_add_u32 {v(t+5)}, {s(sEnd8)}, {v(t+5)}
    v_add_u32 {v(t+5)}, {LIST}, {v(t+5)}
    v_mov_b32 {v(t+8)}, 0
    v_mov_b32 {v(t+9)}, 0
    ds_write_b64 {v(t+5)}, {v(t+8,2)}
    s_waitcnt lgkmcnt(0)""")
    for k in range(12):
        e(f"s_mov_b64 exec, {s(masks[k],2)}")
        if k % 2 == 0:
            e("s_cbranch_execz K2_pl2")
        e(f"""v_add_u32 {v(CA+k)}, {v(CA+k)}, {v(RK+k)}
        ds_write_b64 {v(CA+k)}, {v(R0+2*k,2)}""")
    e.label("K2_pl2")
    e(f"""s_mov_b64 exec, -1
    s_add_u32 {s(sT0)}, {s(sEnd8)}, 255
    s_lshr_b32 {s(sT0)}, {s(sT0)}, 8
    s_lshr_b32 {s(sT1)}, {s(sT0)}, 3
    s_and_b32 {s(sT0)}, {s(sT0)}, 7
    s_mul_i32 {s(sP8)}, {s(sT1)}, {s(sW)}
    s_min_u32 {s(sT2)}, {s(sW)}, {s(sT0)}
    s_add_u32 {s(sP8)}, {s(sP8)}, {s(sT2)}
    s_cmp_lt_u32 {s(sW)}, {s(sT0)}
    s_addc_u32 {s(sT1)}, {s(sT1)}, {s(sP8)}
    s_lshl_b32 {s(sP8)}, {s(sP8)}, 8
    s_lshl_b32 {s(sT1)}, {s(sT1)}, 8
    s_min_u32 {s(sEnd8)}, {s(sEnd8)}, {s(sT1)}
    s_add_u32 {s(sT0)}, {s(sP8)}, {LIST}
    v_and_b32 {v(aLP)}, 31, {v(vL)}
    v_lshl_add_u32 {v(aLP)}, {v(aLP)}, 3, {s(sT0)}
    v_and_b32 {v(aLQ)}, 0x38, {v(vL)}
    v_add_u32 {v(aLQ)}, {s(sT0)}, {v(aLQ)}
    s_movk_i32 {s(sBN)}, -1000
    s_movk_i32 {s(sBC)}, -1000
    s_waitcnt lgkmcnt(0)
    s_barrier""")
    prof("bar3")
    e(f"""s_cmp_ge_u32 {s(sP8)}, {s(sEnd8)}
    s_cbranch_scc1 K2_notiles""")

    uid = [0]

    def S0():
        uid[0] += 1
        u = uid[0]
        e(f"ds_read_b64 {v(REC,2)}, {v(aLP)}")
        e(f"ds_read_u16 {v(G)}, {v(aLP)}")
        for j in range(4):
            e(f"ds_read_u16 {v(IDX+2*j)}, {v(aLQ)} offset:{64*j}")
        e(f"""s_sub_u32 {s(sT0)}, {s(sEnd8)}, {s(sP8)}
        s_lshr_b32 {s(sT0)}, {s(sT0)}, 3
        s_min_u32 {s(sT0)}, {s(sT0)}, 32
        s_sub_u32 {s(sT1)}, {s(sT0)}, 1
        s_waitcnt lgkmcnt(4)
        v_readlane_b32 {s(sT1)}, {v(REC)}, {s(sT1)}
        v_add_u32_sdwa {v(vP)}, {v(aPDc)}, {v(REC+1)} dst_sel:DWORD dst_unused:UNUSED_PAD src0_sel:DWORD src1_sel:WORD_1
        buffer_load_dwordx2 {v(PSV,2)}, {v(G,2)}, {s(rPSI,4)}, 0 idxen offen
        ds_read_b64 {v(PDV,2)}, {v(vP)}
        s_lshr_b32 {s(sT1)}, {s(sT1)}, 16
        s_sub_u32 {s(sT1)}, {s(sT1)}, 16
        s_cmp_lt_i32 {s(sT1)}, {s(sBN)}
        s_cbranch_scc1 K2_s0_{u}
        v_readfirstlane_b32 {s(sT2)}, {v(REC)}
        s_lshr_b32 {s(sBN)}, {s(sT2)}, 16
        v_subrev_u32 {v(aIB)}, {s(sBN)}, {v(aIBc)}
        s_cmp_lt_i32 {s(sT1)}, {s(sBN)}
        s_cbranch_scc1 K2_s0_{u}
        s_add_u32 {s(sT1)}, {s(sBN)}, 16
        s_lshl_b32 {s(sT1)}, {s(sT1)}, 16
        v_cmp_gt_u32 vcc, {s(sT1)}, {v(REC)}
        s_bfm_b64 {s(sM,2)}, {s(sT0)}, 0
        s_and_b32 {s(sM)}, {s(sM)}, vcc_lo
        s_bcnt1_i32_b32 {s(sT0)}, {s(sM)}""")
        e.label(f"K2_s0_{u}")
        e(f"""s_bfm_b64 {s(sM,2)}, {s(sT0)}, 0
        s_lshl_b32 {s(sT0)}, {s(sT0)}, 3
        s_mov_b32 {s(sM+1)}, {s(sM)}
        s_add_u32 {s(sP8)}, {s(sP8)}, {s(sT0)}
        v_add_u32_sdwa {v(aIM)}, {v(aIB)}, {v(REC)} dst_sel:DWORD dst_unused:UNUSED_PAD src0_sel:DWORD src1_sel:WORD_1
        v_add_u32 {v(aLP)}, {s(sT0)}, {v(aLP)}
        v_add_u32 {v(aLQ)}, {s(sT0)}, {v(aLQ)}""")

    def DMA(half):
        for j in range(4):
            e(f"s_add_u32 m0, {s(sSTG)}, {1024*j}")
            e("s_nop 0")
            e(f"buffer_load_dwordx4 {v(IDX+2*j,2)}, {s(rBT,4)}, {s(s128) if half else 0} idxen offen lds")

    def RD():
        for k in range(4):
            e(f"ds_read_b128 {v(BR+4*k,4)}, {v(aBR+k)}")

    def AOP(tt):
        for u in range(2):
            e(f"ds_read_b64_tr_b16 {v(AO+2*u,2)}, {v(aAO)} offset:{tt*PLANE + 256*u}")

    def S1():
        e(f"""v_sub_f32 {v(PDV)}, {v(PDV)}, {v(PSV)}
        v_sub_f32 {v(PDV+1)}, {v(PDV+1)}, {v(PSV+1)}
        v_cvt_pk_bf16_f32 {v(vD)}, {v(PDV)}, {v(PDV+1)}
        v_dot2_f32_bf16 {v(vP)}, {v(vD)}, {v(vD)}, 0
        s_mov_b64 exec, {s(sM,2)}
        ds_write_b16 {v(aIM)}, {v(vD)}
        ds_write_b16_d16_hi {v(aIM)}, {v(vD)} offset:16
        v_cvt_pk_bf16_f32 {v(REC)}, {v(vP)}, {v(vP)}
        ds_write_b64 {v(aXT)}, {v(REC,2)} offset:64
        s_mov_b32 exec_hi, 0
        ds_write_b16 {v(aIM)}, {v(vONE)}
        s_mov_b64 exec, -1""")

    def rebase_ao():
        e(f"v_mad_u32_u24 {v(aAO)}, {v(vH32)}, {s(sBN)}, {v(aAOc)}")

    def S3():
        for k in range(4):
            e(f"ds_read_b64_tr_b16 {v(S4+2*k,2)}, {v(aS4)} offset:{80*8*k}")
        e(f"""s_mov_b64 exec, {s(sM,2)}
        ds_write_b16 {v(aIM)}, {v(vZ)}
        ds_write_b16 {v(aIM)}, {v(vZ)} offset:16
        s_mov_b64 exec, -1""")

    def xm(k, tt):
        if k < 2:
            b = BR + 8 * (tt & 1) + 4 * k
            e(f"{MFMA} {v(X,16)}, {v(b,4)}, {v(ID+4*k,4)}, {v(X,16) if k else 0}")
        else:
            e(f"{MFMA} {v(X,16)}, {v(SO,4)}, {v(AO,4)}, {v(X,16)}")

    def flush(base):
        A = lambda tt, r: ACC + 16 * tt + r
        for tt in range(4):
            for k in range(6):
                if tt == 0:
                    e(f"v_pk_mul_f32 {v(A(0,4+2*k),2)}, {v(A(0,4+2*k),2)}, {v(WX,2)}")
                else:
                    e(f"v_pk_fma_f32 {v(A(0,4+2*k),2)}, {v(A(tt,4+2*k),2)}, {v(WX+2*tt,2)}, {v(A(0,4+2*k),2)}")
        e(f"""s_mul_i32 {s(sT0)}, {s(base)}, 136
        v_add_u32 {v(aF)}, {s(sT0)}, {v(aFMc)}""")
        for c in range(1, 4):
            e(f"v_permlane16_swap_b32 {v(A(0,4*c))}, {v(A(0,4*c+2))}")
            e(f"v_permlane16_swap_b32 {v(A(0,4*c+1))}, {v(A(0,4*c+3))}")
        for c in range(1, 4):
            e(f"v_pk_add_f32 {v(A(0,4*c),2)}, {v(A(0,4*c),2)}, {v(A(0,4*c+2),2)}")
        for i in range(4):
            for tp in range(2):
                e(f"v_cvt_pk_bf16_f32 {v(A(2*tp,i))}, {v(A(2*tp,i))}, {v(A(2*tp+1,i))}")
                e(f"ds_pk_add_bf16 {v(aF)}, {v(A(2*tp,i))} offset:{272*i + 128*tp}")
        e(f"""s_lshl_b32 {s(sT0)}, {s(base)}, 3
        v_add_u32 {v(aF)}, {s(sT0)}, {v(aFPc)}""")
        for c in range(1, 4):
            e(f"v_add_f32_dpp {v(A(0,4*c+2))}, {v(A(0,4*c))}, {v(A(0,4*c))} row_ror:8 row_mask:0xf bank_mask:0xf")
        for c in range(1, 4):
            e(f"v_add_f32_dpp {v(A(0,4*c+2))}, {v(A(0,4*c+1))}, {v(A(0,4*c+1))} row_ror:8 row_mask:0xf bank_mask:0xc")
        for c in range(1, 4):
            e(f"ds_add_f32 {v(aF)}, {v(A(0,4*c+2))} offset:{4*c}")

    def wh_loads():
        e(f"""s_and_b32 {s(sT0)}, {s(sW)}, 3
        s_lshl_b32 {s(sT0)}, {s(sT0)}, 11
        v_lshlrev_b32 {v(IDX)}, 4, {v(vL)}
        v_add_u32 {v(IDX+2)}, 65536, {v(IDX)}
        v_add_u32 {v(IDX+4)}, {65536+4096}, {v(IDX)}
        v_add_u32 {v(IDX)}, 32768, {v(IDX)}
        v_xor_b32 {v(IDX)}, {s(sT0)}, {v(IDX)}""")
        for k in range(4):
            if k:
                e(f"v_xor_b32 {v(IDX+6)}, {2048*k}, {v(IDX)}")
            a = IDX + 6 if k else IDX
            e(f"global_load_dwordx4 {v(WH1+8*k,4)}, {v(a)}, {s(sWF,2)}")
            e(f"global_load_dwordx4 {v(WH1+8*k+4,4)}, {v(a)}, {s(sWF,2)} offset:1024")
        for k in range(8):
            e(f"global_load_dwordx4 {v(WH2+4*k,4)}, {v(IDX+2+2*(k//4))}, {s(sWF,2)} offset:{1024*(k%4)}")

    def unit(tt, nxt, tag):
        e(f"v_exp_f32 {v(T)}, {v(X)}")
        e("s_setprio 1")
        for i in range(1, 8):
            e(f"v_exp_f32 {v(T+i)}, {v(X+i)}")
        e("s_setprio 2")
        for i in range(8, 16):
            e(f"v_exp_f32 {v(T+i)}, {v(X+i)}")
        if tt == 0:
            e(f"""s_cmp_eq_u32 {s(sBP)}, {s(sBC)}
            s_cbranch_scc1 K2_nofl_{tag}
            s_cmp_lt_i32 {s(sBP)}, 0
            s_cbranch_scc1 K2_nofl_{tag}""")
            flush(sBP)
            e.label(f"K2_nofl_{tag}")
        for i in range(8):
            e(f"v_pk_fma_f32 {v(T+2*i,2)}, {v(T+2*i,2)}, {s(sC,2)}, {s(sC,2)}")
        for i in range(16):
            e(f"v_rcp_f32 {v(T+i)}, {v(T+i)}")
        for i in range(8):
            e(f"v_pk_mul_f32 {v(T+2*i,2)}, {v(T+2*i,2)}, {v(X+2*i,2)}")
        dox = tt < 3 or nxt
        e("s_waitcnt lgkmcnt(0)")
        if dox:
            xm(0, tt + 1)
        for i in range(8):
            e(f"v_cvt_pk_bf16_f32 {v(MP+i)}, {v(T+2*i)}, {v(T+2*i+1)}")
        e("s_setprio 3")
        if dox:
            xm(1, tt + 1)
            xm(2, tt + 1)
        a = ACC + 16 * tt
        e(f"""s_cmp_eq_u32 {s(sBP)}, {s(sBC)}
        s_cbranch_scc1 K2_acc_{tag}{tt}
        {MFMA} {v(a,16)}, {v(S4,4)}, {v(MP,4)}, 0
        s_branch K2_acd_{tag}{tt}""")
        e.label(f"K2_acc_{tag}{tt}")
        e(f"{MFMA} {v(a,16)}, {v(S4,4)}, {v(MP,4)}, {v(a,16)}")
        e.label(f"K2_acd_{tag}{tt}")
        e(f"{MFMA} {v(a,16)}, {v(S4+4,4)}, {v(MP+4,4)}, {v(a,16)}")

    def rotate_and_s0():
        e(f"""s_mov_b32 {s(sBP)}, {s(sBC)}
        s_mov_b32 {s(sBC)}, {s(sBN)}
        s_cmp_ge_u32 {s(sP8)}, {s(sEnd8)}
        s_cbranch_scc1 K2_last""")
        S0()

    e("s_setprio 3")
    S0()
    e("s_waitcnt lgkmcnt(0)")
    DMA(0)
    rebase_ao()
    AOP(0)
    e("s_waitcnt vmcnt(4)")
    S1()
    e(f"ds_read_b128 {v(SO,4)}, {v(aSO)}")
    e("s_waitcnt vmcnt(0)")
    RD()
    e("s_waitcnt lgkmcnt(0)")
    DMA(1)
    xm(0, 0); xm(1, 0); xm(2, 0)
    AOP(1)
    S3()
    prof("fill")
    rotate_and_s0()
    e(".p2align 6")
    e.label("K2_loop")
    e("s_setprio 0")
    unit(0, True, "a")
    e("s_waitcnt vmcnt(1)")
    RD()
    AOP(2)
    e("s_waitcnt lgkmcnt(2)")
    DMA(0)
    e("s_setprio 0")
    unit(1, True, "a")
    AOP(3)
    e("s_waitcnt vmcnt(4)")
    S1()
    e("s_setprio 0")
    unit(2, True, "a")
    e("s_waitcnt vmcnt(0)")
    RD()
    rebase_ao()
    AOP(0)
    e(f"ds_read_b128 {v(SO,4)}, {v(aSO)}")
    e("s_waitcnt lgkmcnt(3)")
    DMA(1)
    e("s_setprio 0")
    unit(3, True, "a")
    AOP(1)
    S3()
    rotate_and_s0()
    e("s_branch K2_loop")
    e.label("K2_last")
    prof("last")
    e("s_setprio 0")
    unit(0, False, "b")
    e("s_waitcnt vmcnt(0)")
    RD()
    AOP(2)
    wh_loads()
    e("s_setprio 0")
    unit(1, False, "b")
    AOP(3)
    e("s_nop 4")
    e("s_setprio 0")
    unit(2, False, "b")
    e("s_nop 6")
    e("s_setprio 0")
    unit(3, False, "b")
    e("s_setprio 0")
    flush(sBC)
    e("s_branch K2_post")
    e.label("K2_notiles")
    wh_loads()
    e.label("K2_post")
    prof("main")
    YA, YB, RA, RB = ACC, ACC + 16, ACC + 32, ACC + 48
    aH = IDX
    h_addr(aH, IDX + 2, True)
    h_frags(aH, IDX + 2)
    aM = IDX + 4
    e(f"""v_and_b32 {v(aM)}, 31, {v(vL)}
    v_mul_u32_u24 {v(aM)}, 272, {v(aM)}
    v_lshl_add_u32 {v(aM)}, {v(G+1)}, 1, {v(aM)}
    s_lshr_b32 {s(sT0)}, {s(sW)}, 2
    s_mul_i32 {s(sT0)}, {s(sT0)}, {64*272}
    s_add_u32 {s(sT0)}, {s(sT0)}, {MT}
    v_add_u32 {v(aM)}, {s(sT0)}, {v(aM)}
    s_waitcnt vmcnt(0) lgkmcnt(0)
    s_cmp_ge_u32 {s(sW)}, 4
    s_cbranch_scc1 K2_e1""")

    def gemm(W, first, small):
        for k in range(8):
            if not first:
                e(f"s_waitcnt lgkmcnt({14-2*k})")
            e(f"{MFMA} {v(YA,16)}, {v(W+4*k,4)}, {v(HF0+4*k,4)}, {v(YA,16) if (k or not first) else 0}")
            if small:
                e(f"{MFMA} {v(YB,16)}, {v(HF1+4*k,4)}, {v(W+4*k,4)}, {v(YB,16) if (k or not first) else 0}")
            else:
                e(f"{MFMA} {v(YB,16)}, {v(W+4*k,4)}, {v(HF1+4*k,4)}, {v(YB,16) if (k or not first) else 0}")
        if first:
            for k in range(2):
                e(f"{MFMA} {v(RA,16)}, {v(ID+4*k,4)}, {v(HF0+4*k,4)}, {v(RA,16) if k else 0}")
                if small:
                    e(f"{MFMA} {v(RB,16)}, {v(HF1+4*k,4)}, {v(ID+4*k,4)}, {v(RB,16) if k else 0}")
                else:
                    e(f"{MFMA} {v(RB,16)}, {v(ID+4*k,4)}, {v(HF1+4*k,4)}, {v(RB,16) if k else 0}")

    gemm(WH1, True, False)
    e("s_branch K2_e2")
    e.label("K2_e1")
    gemm(WH1, True, True)
    e.label("K2_e2")
    e("s_barrier")
    prof("bar4")
    e(f"""s_cmp_eq_u32 {s(sMore)}, 0
    s_cbranch_scc1 K2_e3
    s_add_u32 {s(sOff)}, {s(sOff)}, {s(sLim)}
    s_nop 7
    s_branch K2_round""")
    e.label("K2_e3")
    for k in range(8):
        e(f"ds_read_b128 {v(HF0+4*k,4)}, {v(aM)} offset:{32*k}")
        e(f"ds_read_b128 {v(HF1+4*k,4)}, {v(aM)} offset:{32*k + 32*272}")
    rOUT = rH
    e(f"s_mov_b32 {s(sM)}, 1.0")
    e(f"s_mov_b32 {s(sM+1)}, 1.0")
    srd(e, rOUT, s(pOUT), s(pOUT + 1), N * 256)
    aRD, aST = IDX + 2, IDX + 6
    e(f"""v_lshrrev_b32 {v(aST)}, 2, {v(vL)}
    v_and_b32 {v(vD)}, 3, {v(vL)}
    v_lshlrev_b32 {v(vD)}, 4, {v(vD)}
    s_mul_i32 {s(sT1)}, {s(sW)}, 2560
    s_add_u32 {s(sT1)}, {s(sT1)}, {IMG}
    v_mul_u32_u24 {v(aRD)}, 80, {v(aST)}
    v_add3_u32 {v(aRD)}, {v(aRD)}, {v(vD)}, {s(sT1)}
    s_lshr_b32 {s(sT0)}, {s(sW)}, 2
    s_lshl_b32 {s(sT0)}, {s(sT0)}, 6
    s_add_u32 {s(sT0)}, {s(sT0)}, {s(sNB)}
    s_lshl_b32 {s(sT0)}, {s(sT0)}, 8
    s_and_b32 {s(sT1)}, {s(sW)}, 3
    s_lshl_b32 {s(sT1)}, {s(sT1)}, 6
    s_add_u32 {s(sT2)}, {s(sT0)}, {s(sT1)}
    v_lshl_add_u32 {v(aST)}, {v(aST)}, 8, {v(vD)}
    v_add_u32 {v(aST)}, {s(sT2)}, {v(aST)}
    s_cmp_ge_u32 {s(sW)}, 4
    s_cbranch_scc1 K2_e4""")

    def silu_out(Y, R, n):
        for i in range(n // 2):
            e(f"v_pk_mul_f32 {v(T+2*i,2)}, {v(Y+2*i,2)}, {s(sC,2)}")
        for i in range(n):
            e(f"v_exp_f32 {v(T+i)}, {v(T+i)}")
        if n == 2:
            e("s_nop 0")
        for i in range(n // 2):
            e(f"v_pk_add_f32 {v(T+2*i,2)}, {v(T+2*i,2)}, {s(sM,2)}")
        for i in range(n):
            e(f"v_rcp_f32 {v(T+i)}, {v(T+i)}")
        if n == 2:
            e("s_nop 0")
        for i in range(n // 2):
            e(f"v_pk_fma_f32 {v(T+2*i,2)}, {v(T+2*i,2)}, {v(Y+2*i,2)}, {v(R+2*i,2)}")
        for i in range(n // 2):
            e(f"v_cvt_pk_bf16_f32 {v(X+i)}, {v(T+2*i)}, {v(T+2*i+1)}")

    def out_tile(Y, R, rowoff, d):
        silu_out(Y, R, 16)
        for j in range(4):
            e(f"ds_write_b64 {v(aXT)}, {v(X+2*j,2)} offset:{16*j}")
        e(f"ds_read_b128 {v(d,4)}, {v(aRD)}")
        e(f"ds_read_b128 {v(d+4,4)}, {v(aRD)} offset:{16*80}")
        e(f"v_add_u32 {v(vD)}, {rowoff*256}, {v(aST)}")
        e(f"v_add_u32 {v(vP)}, {rowoff*256+4096}, {v(aST)}")
        e("s_waitcnt lgkmcnt(1)")
        e(f"buffer_store_dwordx4 {v(d,4)}, {v(vD)}, {s(rOUT,4)}, 0 offen")
        e("s_waitcnt lgkmcnt(0)")
        e(f"buffer_store_dwordx4 {v(d+4,4)}, {v(vP)}, {s(rOUT,4)}, 0 offen")

    gemm(WH2, False, False)
    e("s_nop 10")
    out_tile(YA, RA, 0, BR)
    out_tile(YB, RB, 32, BR + 8)
    e("s_branch K2_e5")
    e.label("K2_e4")
    gemm(WH2, False, True)
    e("s_nop 10")
    out_tile(YA, RA, 0, BR)
    silu_out(YB, RB, 2)
    e(f"""v_lshl_add_u32 {v(vD)}, {v(vL)}, 1, {s(sT2)}
    v_add_u32 {v(vD)}, {32*256}, {v(vD)}
    s_mov_b32 exec_hi, 0
    buffer_store_short {v(X)}, {v(vD)}, {s(rOUT,4)}, 0 offen
    buffer_store_short_d16_hi {v(X)}, {v(vD)}, {s(rOUT,4)}, 0 offen offset:256
    s_mov_b64 exec, -1""")
    e.label("K2_e5")
    e(f"""s_sub_u32 {s(sT0)}, {N}, {s(sNB)}
    s_min_u32 {s(sT0)}, {s(sT0)}, {NB}
    s_mul_i32 {s(sT0)}, {s(sT0)}, 3
    v_lshl_add_u32 {v(T)}, {s(sW)}, 6, {v(vL)}
    v_subrev_u32 {v(T)}, {512 - 3*NB}, {v(T)}
    v_cmp_gt_u32 vcc, {s(sT0)}, {v(T)}
    s_and_b64 exec, exec, vcc
    s_cbranch_execz K2_fin
    v_mul_u32_u24 {v(T+1)}, 0x5556, {v(T)}
    v_lshrrev_b32 {v(T+1)}, 16, {v(T+1)}
    v_add_u32 {v(T+1)}, {v(T+1)}, {v(T)}
    v_lshlrev_b32 {v(T+1)}, 2, {v(T+1)}
    v_add_u32 {v(T+2)}, {PD}, {v(T+1)}
    v_add_u32 {v(T+1)}, {PACC}, {v(T+1)}
    ds_read_b32 {v(T+2)}, {v(T+2)} offset:4
    ds_read_b32 {v(T+1)}, {v(T+1)} offset:4
    s_mul_i32 {s(sT0)}, {s(sNB)}, 6
    s_add_u32 {s(sT0)}, {s(sT0)}, {N*256}
    v_lshl_add_u32 {v(T)}, {v(T)}, 1, {s(sT0)}
    s_waitcnt lgkmcnt(0)
    v_add_f32 {v(T+1)}, {v(T+1)}, {v(T+2)}
    v_cvt_pk_bf16_f32 {v(T+1)}, {v(T+1)}, {v(T+1)}
    global_store_short {v(T)}, {v(T+1)}, {s(pOUT,2)}""")
    e.label("K2_fin")
    if OPT["prof"]:
        e("s_mov_b64 exec, -1")
        prof("stores")
        e("s_waitcnt vmcnt(0)")
        prof("drained")
        prof.store(pWS, sW, 1, T + 4)
    e.label("K2_end")
    e("s_endpgm")
    return e, lds, nvgpr, prof.names


HEADER = """; EGNN layer (N=25000 nodes, E=400000 edges, D=128), bf16 in / bf16 out.  Generated by gen/gen.py.
"""


def kd(name, nv):
    return f""".amdhsa_kernel {name}
  .amdhsa_next_free_vgpr {nv}
  .amdhsa_next_free_sgpr 102
  .amdhsa_accum_offset {(nv + 3) // 4 * 4}
  .amdhsa_group_segment_fixed_size 0
  .amdhsa_kernarg_size 88
  .amdhsa_user_sgpr_count 2
  .amdhsa_user_sgpr_kernarg_segment_ptr 1
  .amdhsa_system_sgpr_workgroup_id_x 1
.end_amdhsa_kernel
"""


def main():
    a, lds1, nv1, pn1 = k1()
    b, lds2, nv2, pn2 = k2()
    for name, x in (("k1", a), ("k2", b)):
        for p in check_hazards(x.lines):
            print("HAZARD", name, p, file=sys.stderr)
    out = HEADER
    out += f"; @launch kernel=egnn_prep_kernel grid=({NWG},1,1) block=(512,1,1) lds={lds1}\n"
    out += f"; @launch kernel=egnn_main_kernel grid=({NWG},1,1) block=(512,1,1) lds={lds2}\n"
    if OPT["prof"]:
        out += f"; prof0 {' '.join(pn1)}\n"
    out += '.amdgcn_target "amdgcn-amd-amdhsa--gfx950"\n.text\n'
    for name, x in (("egnn_prep_kernel", a), ("egnn_main_kernel", b)):
        out += f".globl {name}\n.p2align 8\n.type {name},@function\n" + x.text()
    out += '.section .rodata,"a"\n.p2align 6\n' + kd("egnn_prep_kernel", nv1) + ".p2align 6\n" + kd("egnn_main_kernel", nv2)
    open(sys.argv[1], "w").write(out)
    print(f"lds {lds1} {lds2}  vgpr {nv1} {nv2}", file=sys.stderr)


main()
```

```python
import sys, struct
from asmlib import Asm, Alloc, v, s, check_hazards

N, E, NB, CH, NWG = 25000, 400000, 98, 1568, 256
WS_BT, WS_REC, WS_TAB, WS_PS, WS_WF, WS_PROF = 0, 0x640000, 0x980000, 0xA00000, 0xA80000, 0x1000000
NEG_LOG2E = struct.unpack("<I", struct.pack("<f", -1.4426950408889634))[0]
MFMA = "v_mfma_f32_32x32x16_bf16"

OPT = dict(prof=0)
for a in sys.argv[2:]:
    k, x = a.split("=")
    OPT[k] = int(x, 0)


def srd(e, d, lo, hi, nrec, stride=0):
    e(f"s_mov_b32 {s(d)}, {lo}")
    if stride:
        e(f"s_or_b32 {s(d+1)}, {hi}, {hex(stride << 16)}")
    else:
        e(f"s_mov_b32 {s(d+1)}, {hi}")
    e(f"s_mov_b32 {s(d+2)}, {nrec}")
    e(f"s_mov_b32 {s(d+3)}, 0x20000")


def addptr(e, d, base, off):
    e(f"s_add_u32 {s(d)}, {s(base)}, {hex(off)}")
    e(f"s_addc_u32 {s(d+1)}, {s(base+1)}, 0")


def scan64(e, r):
    for m in ("row_shr:1 row_mask:0xf", "row_shr:2 row_mask:0xf", "row_shr:4 row_mask:0xf", "row_shr:8 row_mask:0xf",
              "row_bcast:15 row_mask:0xa", "row_bcast:31 row_mask:0xc"):
        e("s_nop 1")
        e(f"v_add_u32_dpp {v(r)}, {v(r)}, {v(r)} {m} bank_mask:0xf")


class Prof:
    def __init__(self, e, sbase, n):
        self.e, self.sb, self.n, self.names = e, sbase, n, []

    def __call__(self, name):
        if not OPT["prof"]:
            return
        i = len(self.names)
        assert i < self.n
        self.names.append(name)
        if i == 0:
            self.e(f"s_memrealtime {s(self.sb + self.n + 2, 2)}")
        self.e(f"s_memtime {s(self.sb + self.n, 2)}")
        self.e("s_waitcnt lgkmcnt(0)")
        self.e(f"s_mov_b32 {s(self.sb + i)}, {s(self.sb + self.n)}")

    def store(self, ws, sW, region, tmp):
        if not OPT["prof"]:
            return
        e = self.e
        e(f"s_memrealtime {s(self.sb + self.n, 2)}")
        e(f"s_lshl_b32 s3, s2, 3")
        e(f"s_add_u32 s3, s3, {s(sW)}")
        e(f"s_lshl_b32 s3, s3, 7")
        e(f"s_add_u32 s3, s3, {hex(WS_PROF + region * 0x100000)}")
        e("s_waitcnt lgkmcnt(0)")
        e(f"v_mov_b32 {v(tmp)}, s3")
        for i in range(len(self.names)):
            e(f"v_mov_b32 {v(tmp+1)}, {s(self.sb+i)}")
            e(f"global_store_dword {v(tmp)}, {v(tmp+1)}, {s(ws,2)} offset:{4*i}")
        e(f"v_mov_b32 {v(tmp+1)}, {s(self.sb+self.n)}")
        e(f"global_store_dword {v(tmp)}, {v(tmp+1)}, {s(ws,2)} offset:124")
        e(f"v_mov_b32 {v(tmp+1)}, {s(self.sb+self.n+2)}")
        e(f"global_store_dword {v(tmp)}, {v(tmp+1)}, {s(ws,2)} offset:120")


def k1():
    e = Asm()
    L = Alloc(0, 160 * 1024)
    CNT = L(1024, 16)
    BASE = L(1024, 16)
    RECS = L(CH * 8, 16)
    HT = L(25600, 256)
    W2 = L(32768, 256)
    OUT = L(128 * 272, 16)
    lds = L.p
    pH, pPOS, pEA, pSRC, pDST, pWE, pWX, pWH, pWS = 4, 6, 8, 10, 12, 14, 16, 18, 20
    rH, rWE = 24, 28
    sW, sE0, sLim, sNB, sT0, sT1, sC = 32, 33, 34, 35, 36, 37, 38
    sEM, sC2, sP = 40, 42, 44
    prof = Prof(e, 60, 16)
    vL, vDST, vSRC, vEA, vCA, vRK, vREC = 1, 4, 8, 12, 16, 20, 24
    t = 32
    vWF, vHF, vACC = 64, 96, 160

    e.label("egnn_prep_kernel")
    e(f"""s_cmp_ge_u32 s2, {NWG}
    s_cbranch_scc1 K1_end
    s_load_dwordx16 s[4:19], s[0:1], 0
    s_load_dwordx2 s[20:21], s[0:1], 80""")
    prof("start")
    e(f"""v_lshrrev_b32 v2, 6, v0
    v_and_b32 {v(vL)}, 63, v0
    v_readfirstlane_b32 {s(sW)}, v2
    s_mul_i32 {s(sE0)}, s2, {CH}
    s_sub_u32 {s(sLim)}, {E}, {s(sE0)}
    s_lshr_b32 {s(sLim)}, {s(sLim)}, 2
    s_min_u32 {s(sLim)}, {s(sLim)}, {CH // 4}
    s_lshl_b32 {s(sT0)}, {s(sE0)}, 1
    v_lshl_add_u32 v3, v0, 3, {s(sT0)}
    v_lshlrev_b32 v2, 1, v3
    s_mul_i32 {s(sNB)}, s2, {NB}
    v_cmp_gt_u32 vcc, {s(sLim)}, v0
    s_and_b64 {s(sEM,2)}, vcc, exec
    s_mov_b64 exec, {s(sEM,2)}
    s_waitcnt lgkmcnt(0)
    s_cbranch_execz K1_noedge
    global_load_dwordx4 {v(vDST,4)}, v2, {s(pDST,2)}
    global_load_dwordx4 {v(vSRC,4)}, v2, {s(pSRC,2)}
    global_load_dwordx2 {v(vEA,2)}, v3, {s(pEA,2)}""")
    e.label("K1_noedge")
    prof("eld")
    e("s_mov_b64 exec, -1")
    srd(e, rH, s(pH), s(pH + 1), N * 256)
    srd(e, rWE, s(pWE), s(pWE + 1), 258 * 256)
    e(f"""v_lshrrev_b32 {v(t)}, 4, v0
    v_xor_b32 {v(t+1)}, {v(t)}, v0
    v_and_b32 {v(t+1)}, 15, {v(t+1)}
    v_add_u32 {v(t+2)}, {s(sNB)}, {v(t)}
    v_lshlrev_b32 {v(t+2)}, 8, {v(t+2)}
    v_lshl_add_u32 {v(t+2)}, {v(t+1)}, 4, {v(t+2)}
    v_lshlrev_b32 {v(t+3)}, 2, {v(t)}
    v_xor_b32 {v(t+3)}, {v(t+3)}, v0
    v_and_b32 {v(t+3)}, 15, {v(t+3)}
    v_lshlrev_b32 {v(t+4)}, 8, {v(t)}
    v_lshl_add_u32 {v(t+3)}, {v(t+3)}, 4, {v(t+4)}
    v_add_u32 {v(t+3)}, {128*256}, {v(t+3)}
    s_lshl_b32 {s(sT0)}, {s(sW)}, 10""")
    prof("addr")
    for k in range(3):
        e(f"""s_add_u32 m0, {s(sT0)}, {HT + 8192*k}
        v_add_u32 {v(t+5)}, {8192*k}, {v(t+2)}
        buffer_load_dwordx4 {v(t+5)}, {s(rH,4)}, 0 offen lds""")
    prof("hdma")
    for k in range(4):
        e(f"""s_add_u32 m0, {s(sT0)}, {W2 + 8192*k}
        v_add_u32 {v(t+5)}, {8192*k}, {v(t+3)}
        buffer_load_dwordx4 {v(t+5)}, {s(rWE,4)}, 0 offen lds""")
    e(f"""s_cmp_lg_u32 {s(sW)}, 0
    s_cbranch_scc1 K1_no4
    s_mov_b32 m0, {HT + 8192*3}
    v_add_u32 {v(t+5)}, {8192*3}, {v(t+2)}
    buffer_load_dwordx4 {v(t+5)}, {s(rH,4)}, 0 offen lds""")
    e.label("K1_no4")
    prof("wdma")
    e(f"""v_mov_b32 {v(t)}, 0
    v_lshlrev_b32 {v(t+1)}, 1, v0
    v_and_b32 {v(t+1)}, 0x3fc, {v(t+1)}
    ds_write_b32 {v(t+1)}, {v(t)} offset:{CNT}
    s_mov_b32 {s(sC)}, {hex(NEG_LOG2E)}
    s_mov_b32 {s(sC+1)}, {hex(NEG_LOG2E)}
    s_waitcnt lgkmcnt(0)
    s_barrier""")
    prof("bar1")
    e(f"""s_cmp_eq_u32 {s(sW)}, 7
    s_cbranch_scc1 K1_side
    s_mov_b64 exec, {s(sEM,2)}
    s_cbranch_execz K1_rank_done
    v_mov_b32 {v(t+8)}, 8
    s_movk_i32 {s(sT0)}, {-NB}
    s_waitcnt vmcnt(7)""")
    prof("edges")
    for i in range(4):
        e(f"""v_mul_u32_u24 {v(t+i)}, 21400, {v(vDST+i)}
        v_lshrrev_b32 {v(t+i)}, 21, {v(t+i)}
        v_lshlrev_b32 {v(vCA+i)}, 2, {v(t+i)}
        ds_add_rtn_u32 {v(vRK+i)}, {v(vCA+i)}, {v(t+8)} offset:{CNT}""")
    for i in range(4):
        e(f"v_mad_i32_i24 {v(t+i)}, {v(t+i)}, {s(sT0)}, {v(vDST+i)}")
        e(f"v_lshl_or_b32 {v(vREC+2*i)}, {v(t+i)}, 17, {v(vSRC+i)}")
        if i & 1:
            e(f"v_lshrrev_b32 {v(t+4)}, 16, {v(vEA+i//2)}")
        else:
            e(f"v_and_b32 {v(t+4)}, 0xffff, {v(vEA+i//2)}")
        e(f"v_lshl_or_b32 {v(vREC+2*i+1)}, {v(t+i)}, 20, {v(t+4)}")
    e("s_branch K1_rank_done")
    e.label("K1_side")
    e(f"""s_add_u32 {s(sT0)}, {s(sNB)}, {NB}
    s_min_u32 {s(sT0)}, {s(sT0)}, {N}""")
    addptr(e, sP, pWS, WS_PS)
    for i in range(8):
        e(f"v_mov_b32 {v(t+8+i)}, 0")
    e(f"""v_add_u32 {v(t)}, {s(sNB)}, {v(vL)}
    v_add_u32 {v(t+1)}, 64, {v(t)}
    v_mul_u32_u24 {v(t+2)}, 6, {v(t)}
    v_lshlrev_b32 {v(t+3)}, 4, {v(t)}
    v_cmp_gt_u32 vcc, {s(sT0)}, {v(t)}
    v_cmp_gt_u32 {s(sC2,2)}, {s(sT0)}, {v(t+1)}
    s_mov_b64 exec, vcc""")
    for i in range(3):
        e(f"global_load_ushort {v(t+9+i)}, {v(t+2)}, {s(pPOS,2)} offset:{2*i}")
    e(f"""s_mov_b64 exec, {s(sC2,2)}
    s_cbranch_execz K1_ps1""")
    for i in range(3):
        e(f"global_load_ushort {v(t+13+i)}, {v(t+2)}, {s(pPOS,2)} offset:{384+2*i}")
    e.label("K1_ps1")
    e(f"""s_mov_b64 exec, -1
    s_cmp_ge_u32 s2, 96
    s_cbranch_scc1 K1_nowf
    s_and_b32 {s(sT0)}, s2, 7
    s_bfe_u32 {s(sT1)}, s2, {hex((2 << 16) | 3)}
    s_lshl_b32 {s(sT1)}, {s(sT1)}, 6
    v_and_b32 {v(t+4)}, 31, {v(vL)}
    v_lshl_add_u32 {v(t+4)}, {v(t+4)}, 1, {s(sT1)}
    v_lshrrev_b32 {v(t+5)}, 5, {v(vL)}
    s_cmp_ge_u32 s2, 64
    s_cbranch_scc1 K1_wf2
    s_cmp_ge_u32 s2, 32
    s_cselect_b32 {s(sP+2)}, {s(pWH)}, {s(pWE)}
    s_cselect_b32 {s(sP+3)}, {s(pWH+1)}, {s(pWE+1)}
    s_lshl_b32 {s(sT0)}, {s(sT0)}, 12
    v_lshl_add_u32 {v(t+4)}, {v(t+5)}, 11, {v(t+4)}
    v_add_u32 {v(t+4)}, {s(sT0)}, {v(t+4)}""")
    for j in range(8):
        e(f"global_load_ushort {v(t+16+j//2+4*(j&1))}, {v(t+4)}, {s(sP+2,2)} offset:{256*j}")
    e("s_branch K1_wfst")
    e.label("K1_wf2")
    e(f"""s_lshl_b32 {s(sT0)}, {s(sT0)}, 10
    s_add_u32 {s(sT0)}, {s(sT0)}, {128*256}
    v_lshl_add_u32 {v(t+4)}, {v(t+5)}, 9, {v(t+4)}
    v_add_u32 {v(t+4)}, {s(sT0)}, {v(t+4)}
    v_add_u32 {v(t+5)}, 8192, {v(t+4)}
    v_add_u32 {v(t+6)}, 16384, {v(t+4)}
    v_add_u32 {v(t+7)}, 24576, {v(t+4)}""")
    for j in range(8):
        e(f"global_load_ushort {v(t+16+j//2+4*(j&1))}, {v(t+4+(j&3))}, {s(pWH,2)} offset:{256*(j//4)}")
    e.label("K1_wfst")
    e(f"""s_lshl_b32 {s(sT0)}, s2, 10
    s_add_u32 {s(sT0)}, {s(sT0)}, {hex(WS_WF)}
    v_lshl_add_u32 {v(t+4)}, {v(vL)}, 4, {s(sT0)}
    s_waitcnt vmcnt(0)""")
    for j in range(4):
        e(f"v_lshl_or_b32 {v(t+16+j)}, {v(t+20+j)}, 16, {v(t+16+j)}")
    e(f"global_store_dwordx4 {v(t+4)}, {v(t+16,4)}, {s(pWS,2)}")
    e.label("K1_nowf")
    e("s_waitcnt vmcnt(0)")
    for i in (1, 2, 3, 5, 6, 7):
        e(f"v_lshlrev_b32 {v(t+8+i)}, 16, {v(t+8+i)}")
    e(f"""global_store_dwordx4 {v(t+3)}, {v(t+8,4)}, {s(sP,2)}
    s_mov_b64 exec, {s(sC2,2)}
    s_cbranch_execz K1_rank_done
    global_store_dwordx4 {v(t+3)}, {v(t+12,4)}, {s(sP,2)} offset:1024""")
    e.label("K1_rank_done")
    e("s_mov_b64 exec, -1")
    aW, aH = t + 20, t + 21
    e(f"""s_and_b32 {s(sT0)}, {s(sW)}, 3
    s_lshr_b32 {s(sT1)}, {s(sW)}, 2
    v_bfe_u32 {v(t)}, {v(vL)}, 2, 2
    v_lshrrev_b32 {v(t+1)}, 5, {v(vL)}
    v_lshl_add_u32 {v(t+2)}, {v(t+1)}, 3, {v(t)}
    v_lshlrev_b32 {v(aW)}, 8, {v(t+2)}
    v_xor_b32 {v(t)}, {s(sT0)}, {v(t)}
    v_lshl_add_u32 {v(aW)}, {v(t)}, 6, {v(aW)}
    v_bfe_u32 {v(t)}, {v(vL)}, 4, 1
    v_lshl_add_u32 {v(aW)}, {v(t)}, 5, {v(aW)}
    v_and_b32 {v(t)}, 3, {v(vL)}
    v_lshl_add_u32 {v(aW)}, {v(t)}, 3, {v(aW)}
    v_add_u32 {v(aW)}, {W2}, {v(aW)}
    v_and_b32 {v(t)}, 31, {v(vL)}
    v_and_b32 {v(t+2)}, 15, {v(vL)}
    v_xor_b32 {v(t+2)}, {v(t+2)}, {v(t+1)}
    v_lshlrev_b32 {v(t+2)}, 4, {v(t+2)}
    v_lshl_add_u32 {v(aH)}, {v(t)}, 8, {v(t+2)}
    s_lshl_b32 {s(sC2)}, {s(sT1)}, 14
    v_add_u32 {v(aH)}, {s(sC2)}, {v(aH)}""")
    aO = t + 22
    e(f"""v_mul_u32_u24 {v(aO)}, 272, {v(t)}
    v_lshl_add_u32 {v(aO)}, {v(t+1)}, 3, {v(aO)}
    s_mul_i32 {s(sC2)}, {s(sT1)}, {64*272}
    s_lshl_b32 {s(sT0)}, {s(sT0)}, 6
    s_add_u32 {s(sC2)}, {s(sC2)}, {s(sT0)}
    s_add_u32 {s(sC2)}, {s(sC2)}, {OUT}
    v_add_u32 {v(aO)}, {s(sC2)}, {v(aO)}
    v_lshlrev_b32 {v(t+10)}, 4, {v(vL)}
    s_waitcnt vmcnt(0) lgkmcnt(0)
    s_barrier""")
    prof("bar2")
    c = t + 4
    e(f"ds_read_b128 {v(c,4)}, {v(t+10)} offset:{CNT}")
    for sidx in range(8):
        for u in range(2):
            e(f"ds_read_b64_tr_b16 {v(vWF+4*sidx+2*u,2)}, {v(aW)} offset:{(16*sidx+4*u)*256}")
    e(f"""s_waitcnt lgkmcnt(14)
    v_add_u32 {v(t+12)}, {v(c)}, {v(c+1)}
    v_add3_u32 {v(t+11)}, {v(t+12)}, {v(c+2)}, {v(c+3)}
    v_mov_b32 {v(t+9)}, {v(t+11)}""")
    scan64(e, t + 9)
    e(f"""v_sub_u32 {v(t+12)}, {v(t+9)}, {v(t+11)}
    v_add_u32 {v(t+13)}, {v(t+12)}, {v(c)}
    v_add_u32 {v(t+14)}, {v(t+13)}, {v(c+1)}
    v_add_u32 {v(t+15)}, {v(t+14)}, {v(c+2)}
    ds_write_b128 {v(t+10)}, {v(t+12,4)} offset:{BASE}
    s_cmp_lg_u32 {s(sW)}, 7
    s_cbranch_scc1 K1_notab""")
    for i in range(4):
        e(f"v_lshl_or_b32 {v(t+16+i)}, {v(c+i)}, 16, {v(t+12+i)}")
    e(f"""s_lshl_b32 {s(sT0)}, s2, 10
    s_add_u32 {s(sT0)}, {s(sT0)}, {hex(WS_TAB)}
    v_add_u32 {v(t+11)}, {s(sT0)}, {v(t+10)}
    global_store_dwordx4 {v(t+11)}, {v(t+16,4)}, {s(pWS,2)}""")
    e.label("K1_notab")
    prof("scan")
    e(f"s_mov_b64 exec, {s(sEM,2)}")
    for i in range(4):
        e(f"ds_read_b32 {v(t+i)}, {v(vCA+i)} offset:{BASE}")
    e("s_mov_b64 exec, -1")
    for sidx in range(8):
        if sidx:
            e(f"v_xor_b32 {v(t+23)}, {32*sidx}, {v(aH)}")
        a = aH if sidx == 0 else t + 23
        e(f"ds_read_b128 {v(vHF+4*sidx,4)}, {v(a)} offset:{HT}")
        e(f"ds_read_b128 {v(vHF+32+4*sidx,4)}, {v(a)} offset:{HT+8192}")
    e(f"""s_waitcnt lgkmcnt(14)
    s_mov_b64 exec, {s(sEM,2)}""")
    for i in range(4):
        e(f"v_add_u32 {v(t+i)}, {v(t+i)}, {v(vRK+i)}")
        e(f"ds_write_b64 {v(t+i)}, {v(vREC+2*i,2)} offset:{RECS}")
    e("s_mov_b64 exec, -1")
    e("s_waitcnt lgkmcnt(0)")
    prof("placed")
    for sidx in range(8):
        for r in range(2):
            a = vACC + 16 * r
            e(f"{MFMA} {v(a,16)}, {v(vWF+4*sidx,4)}, {v(vHF+32*r+4*sidx,4)}, {v(a,16) if sidx else 0}")
    e("s_nop 10")
    prof("mfma")
    for r in range(2):
        a = vACC + 16 * r
        for k in range(8):
            e(f"v_pk_mul_f32 {v(a+2*k,2)}, {v(a+2*k,2)}, {s(sC,2)}")
        for k in range(8):
            e(f"v_cvt_pk_bf16_f32 {v(vHF+8*r+k)}, {v(a+2*k)}, {v(a+2*k+1)}")
        for j in range(4):
            e(f"ds_write_b64 {v(aO)}, {v(vHF+8*r+2*j,2)} offset:{r*32*272 + 16*j}")
    e(f"""v_lshlrev_b32 {v(t)}, 4, v0
    v_lshrrev_b32 {v(t+1)}, 4, v0
    v_lshl_add_u32 {v(t+1)}, {v(t+1)}, 4, {v(t)}
    v_add_u32 {v(t+1)}, {OUT}, {v(t+1)}
    s_mul_i32 {s(sT0)}, s2, {CH*8}
    s_add_u32 {s(sT0)}, {s(sT0)}, {hex(WS_REC)}
    v_add_u32 {v(t+2)}, {s(sT0)}, {v(t)}
    v_add_u32 {v(t+3)}, 8192, {v(t+2)}
    s_lshl_b32 {s(sT0)}, {s(sNB)}, 8
    v_add_u32 {v(t+4)}, {s(sT0)}, {v(t)}
    v_add_u32 {v(t+5)}, 8192, {v(t+4)}
    v_add_u32 {v(t+6)}, 16384, {v(t+4)}
    v_add_u32 {v(t+7)}, 24576, {v(t+4)}
    s_movk_i32 {s(sT0)}, {CH*8//16 - 512}
    v_cmp_gt_u32 vcc, {s(sT0)}, v0
    s_waitcnt lgkmcnt(0)
    s_barrier""")
    prof("bar3")
    d = vWF
    e(f"ds_read_b128 {v(d,4)}, {v(t)} offset:{RECS}")
    e(f"ds_read_b128 {v(d+4,4)}, {v(t)} offset:{RECS+8192}")
    for k in range(4):
        e(f"ds_read_b128 {v(d+8+4*k,4)}, {v(t+1)} offset:{8704*k}")
    e(f"""s_waitcnt lgkmcnt(5)
    global_store_dwordx4 {v(t+2)}, {v(d,4)}, {s(pWS,2)}""")
    for k in range(3):
        e(f"s_waitcnt lgkmcnt({3-k})")
        e(f"global_store_dwordx4 {v(t+4+k)}, {v(d+8+4*k,4)}, {s(pWS,2)}")
    e(f"""s_mov_b64 exec, vcc
    s_cbranch_execz K1_fin
    global_store_dwordx4 {v(t+3)}, {v(d+4,4)}, {s(pWS,2)}
    s_cmp_lg_u32 {s(sW)}, 0
    s_cbranch_scc1 K1_fin
    s_mov_b32 exec_hi, 0
    s_waitcnt lgkmcnt(0)
    global_store_dwordx4 {v(t+7)}, {v(d+20,4)}, {s(pWS,2)}""")
    e.label("K1_fin")
    if OPT["prof"]:
        e("s_mov_b64 exec, -1")
        prof("stores")
        e("s_waitcnt vmcnt(0)")
        prof("drained")
        prof.store(pWS, sW, 0, t + 10)
    e.label("K1_end")
    e("s_endpgm")
    return e, lds, 192, prof.names


def k2():
    e = Asm()
    CAP = 2048
    L = Alloc(0, 160 * 1024)
    CNT = L(512, 16)
    BASE = L(512, 16)
    FLAG = L(16, 16)
    HT = L(25600, 256)
    STG = L(8 * 4096, 256)
    PLANE = 106 * 64
    AT = L(4 * PLANE, 16)
    Z0 = L(0, 16)
    MT = L(106 * 272, 16)
    PACC = L(105 * 48, 16)
    IMG = L(8 * 2560, 16)
    Z1 = L(0, 16)
    LIST = L((CAP + 64) * 8, 16)
    PD = L(2048, 16)
    lds = L.p
    assert Z1 - Z0 <= 7 * 8192 and Z0 + 7 * 8192 <= PD

    S = Alloc(4, 102)
    pH = S(2, 4); pPOS = S(2); pEA = S(2); pSRC = S(2); pDST = S(2); pWE = S(2); pWX = S(2); pWH = S(2)
    pOUT = S(2, 4); pDBG = S(2); pWS = S(2)
    rH = S(4, 4); rREC = S(4, 4); rBT = S(4, 4); rPSI = S(4, 4)
    rPS = rREC
    sW = S(); sNB = S(); sOff = S(); sLim = S(); sFirst = S(); sT0 = S(); sT1 = S(); sT2 = S()
    sC = S(2, 2); sM = S(2, 2); sWF = S(2, 2)
    sP8 = S(); sEnd8 = S(); sBN = S(); sBC = S(); sBP = S(); sSTG = S(); s128 = S(); sMore = S(); sFN = S(); sLN = S()
    sK0 = pDBG; sK1 = pDBG + 1
    sMK = pPOS
    masks = [pPOS, pEA, pSRC, pDST] + [S(2, 2) for _ in range(8)]
    prof = Prof(e, S(18, 2), 14) if OPT["prof"] else Prof(e, 0, 0)

    V = Alloc(0, 256)
    ACC = V(64)
    X = V(16); T = V(16)
    BR = V(16); AO = V(4); SO = V(4); S4 = V(8)
    MP = V(8); ID = V(8)
    IDX = V(8); G = V(2); REC = V(2); PSV = V(2); PDV = V(2); WX = V(8)
    aBR = V(4); aSO = V(); aS4 = V(); aAO = V(); aAOc = V(); vH32 = V(); aLP = V(); aLQ = V()
    aIM = V(); aIB = V(); aIBc = V(); aXT = V(); aPDc = V(); vD = V(); vP = V(); vONE = V(); vZ = V()
    aFMc = V(); aFPc = V(); aF = vD; vL = V()
    vTID = MP
    WH1 = V(32, 2); WH2 = V(32, 2)
    nvgpr = V.p

    R0 = ACC
    CA = ACC + 24
    RK = ACC + 36
    t = ACC + 48
    W1 = WH1
    HF0, HF1 = X, BR
    GA = WH2

    e.label("egnn_main_kernel")
    e(f"""s_cmp_ge_u32 s2, {NWG}
    s_cbranch_scc1 K2_end
    s_load_dwordx16 {s(pH,16)}, s[0:1], 0
    s_load_dwordx4 {s(pOUT,4)}, s[0:1], 64
    s_load_dwordx2 {s(pWS,2)}, s[0:1], 80""")
    prof("start")
    e(f"""v_and_b32 {v(vL)}, 63, v0
    v_lshrrev_b32 {v(t)}, 6, v0
    s_mul_i32 {s(sNB)}, s2, {NB}
    v_readfirstlane_b32 {s(sW)}, {v(t)}
    s_mov_b32 {s(sOff)}, 0
    s_mov_b32 {s(sLim)}, {24*8}
    s_mov_b32 {s(sFirst)}, 1
    s_mov_b32 {s(sC)}, {hex(NEG_LOG2E)}
    s_mov_b32 {s(sC+1)}, {hex(NEG_LOG2E)}
    s_movk_i32 {s(s128)}, 128
    s_waitcnt lgkmcnt(0)
    s_movk_i32 {s(sK0)}, 0x3f80
    s_mov_b32 {s(sK1)}, 0x3f800000""")
    srd(e, rREC, s(pWS), s(pWS + 1), hex(WS_PROF))
    e.label("K2_round")
    vTAB = t + 15
    e(f"""v_lshl_add_u32 {v(vTID)}, {s(sW)}, 6, {v(vL)}
    v_lshrrev_b32 {v(t)}, 1, {v(vTID)}
    s_lshl_b32 {s(sT0)}, s2, 2
    s_add_u32 {s(sT0)}, {s(sT0)}, {hex(WS_TAB)}
    v_lshl_add_u32 {v(t+1)}, {v(t)}, 10, {s(sT0)}
    global_load_dword {v(vTAB)}, {v(t+1)}, {s(pWS,2)}
    v_mov_b32 {v(vZ)}, 0
    v_and_b32 {v(t+1)}, 0x1fc, {v(vTID)}
    ds_write_b32 {v(t+1)}, {v(vZ)} offset:{CNT}
    ds_write_b32 {v(vZ)}, {v(vZ)} offset:{FLAG}
    ds_write_b32 {v(vZ)}, {v(vZ)} offset:{FLAG+4}
    s_cmp_eq_u32 {s(sFirst)}, 0
    s_cbranch_scc1 K2_nf1""")
    srd(e, rH, s(pH), s(pH + 1), N * 256)
    e(f"""v_lshrrev_b32 {v(t+2)}, 4, {v(vTID)}
    v_xor_b32 {v(t+3)}, {v(t+2)}, {v(vTID)}
    v_and_b32 {v(t+3)}, 15, {v(t+3)}
    v_add_u32 {v(t+2)}, {s(sNB)}, {v(t+2)}
    v_lshlrev_b32 {v(t+2)}, 8, {v(t+2)}
    v_lshl_add_u32 {v(t+2)}, {v(t+3)}, 4, {v(t+2)}
    s_lshl_b32 {s(sT0)}, {s(sW)}, 10""")
    for k in range(3):
        e(f"""s_add_u32 m0, {s(sT0)}, {HT + 8192*k}
        v_add_u32 {v(t+3)}, {8192*k}, {v(t+2)}
        buffer_load_dwordx4 {v(t+3)}, {s(rH,4)}, 0 offen lds""")
    e(f"""s_and_b32 {s(sT1)}, {s(sW)}, 3
    s_lshl_b32 {s(sT1)}, {s(sT1)}, 13
    s_add_u32 {s(sT1)}, {s(sT1)}, {hex(WS_WF)}
    s_add_u32 {s(sWF)}, {s(pWS)}, {s(sT1)}
    s_addc_u32 {s(sWF+1)}, {s(pWS+1)}, 0
    v_lshlrev_b32 {v(t+4)}, 4, {v(vL)}
    v_add_u32 {v(t+5)}, 4096, {v(t+4)}""")
    for k in range(8):
        e(f"global_load_dwordx4 {v(W1+4*k,4)}, {v(t+4+k//4)}, {s(sWF,2)} offset:{1024*(k%4)}")
    e(f"""v_and_b32 {v(t+6)}, 31, {v(vL)}
    v_lshlrev_b32 {v(t+7)}, 1, {v(t+6)}""")
    for k in range(4):
        e(f"global_load_ushort {v(WX+2*k)}, {v(t+7)}, {s(pWX,2)} offset:{64*k}")
    e(f"""s_cmp_lg_u32 {s(sW)}, 0
    s_cbranch_scc1 K2_j1
    s_mov_b32 m0, {HT + 8192*3}
    v_add_u32 {v(t+3)}, {8192*3}, {v(t+2)}
    buffer_load_dwordx4 {v(t+3)}, {s(rH,4)}, 0 offen lds
    s_branch K2_j3""")
    e.label("K2_j1")
    e(f"""s_cmp_gt_u32 {s(sW)}, 2
    s_cbranch_scc1 K2_j2
    s_add_u32 m0, {s(sT0)}, {PD - 1024}
    s_lshl_b32 {s(sT1)}, {s(sNB)}, 4
    s_add_u32 {s(sT1)}, {s(sT1)}, {hex(WS_PS - 1024)}
    v_lshl_add_u32 {v(t+3)}, {v(vTID)}, 4, {s(sT1)}
    buffer_load_dwordx4 {v(t+3)}, {s(rPS,4)}, 0 offen lds
    s_branch K2_j3""")
    e.label("K2_j2")
    e(f"""s_cmp_lt_u32 {s(sW)}, 6
    s_cbranch_scc1 K2_j3
    v_lshlrev_b32 {v(t+3)}, 1, {v(vTID)}
    v_add_u32 {v(t+3)}, {256*256 - 768}, {v(t+3)}
    global_load_ushort {v(PSV)}, {v(t+3)}, {s(pWE,2)}
    global_load_ushort {v(PSV+1)}, {v(t+3)}, {s(pWE,2)} offset:256""")
    e.label("K2_j3")
    for k in range(4):
        e(f"v_mov_b32 {v(t+8+k)}, 0")
    e(f"""v_lshlrev_b32 {v(t+3)}, 4, {v(vTID)}
    v_add_u32 {v(t+3)}, {Z0}, {v(t+3)}""")
    for k in range(7):
        e(f"ds_write_b128 {v(t+3)}, {v(t+8,4)} offset:{8192*k}")
    srd(e, rBT, s(pWS), s(pWS + 1), N, stride=256)
    addptr(e, rPSI, pWS, WS_PS)
    e(f"""s_or_b32 {s(rPSI+1)}, {s(rPSI+1)}, {hex(16 << 16)}
    s_mov_b32 {s(rPSI+2)}, {N}
    s_mov_b32 {s(rPSI+3)}, 0x20000""")
    vE, vH = t + 6, t + 7
    e(f"""v_lshrrev_b32 {v(vH)}, 5, {v(vL)}
    s_mul_i32 {s(sT1)}, {s(sW)}, 2560
    s_add_u32 {s(sT1)}, {s(sT1)}, {IMG}
    s_lshl_b32 {s(sSTG)}, {s(sW)}, 12
    s_add_u32 {s(sSTG)}, {s(sSTG)}, {STG}
    v_mul_u32_u24 {v(t+2)}, 80, {v(vE)}
    v_add_u32 {v(t+2)}, {s(sT1)}, {v(t+2)}
    v_lshl_add_u32 {v(aIBc)}, {v(vH)}, 5, {v(t+2)}
    v_lshl_add_u32 {v(aSO)}, {v(vH)}, 6, {v(t+2)}
    v_lshl_add_u32 {v(aXT)}, {v(vH)}, 3, {v(t+2)}
    v_lshlrev_b32 {v(G+1)}, 3, {v(vH)}
    v_add_u32 {v(aPDc)}, {PD}, {v(G+1)}
    v_mov_b32 {v(vONE)}, 0x3f80
    v_bfe_u32 {v(t+2)}, {v(vL)}, 2, 2
    v_bfe_u32 {v(t+3)}, {v(vL)}, 4, 1
    v_and_b32 {v(t+4)}, 3, {v(vL)}
    v_lshlrev_b32 {v(t+4)}, 3, {v(t+4)}
    v_lshl_add_u32 {v(t+4)}, {v(t+3)}, 5, {v(t+4)}
    v_lshl_add_u32 {v(t+5)}, {v(vH)}, 2, {v(t+2)}
    v_mul_u32_u24 {v(t+5)}, 80, {v(t+5)}
    v_add3_u32 {v(aS4)}, {v(t+5)}, {v(t+4)}, {s(sT1)}
    v_mul_u32_u24 {v(t+5)}, {NB}, {v(vH)}
    v_add_u32 {v(t+5)}, {v(t+5)}, {v(t+2)}
    v_lshl_add_u32 {v(t+5)}, {v(t+5)}, 6, {v(t+4)}
    v_add_u32 {v(aAOc)}, {AT}, {v(t+5)}
    v_lshlrev_b32 {v(vH32)}, 5, {v(vH)}
    v_sub_u32 {v(vH32)}, 32, {v(vH32)}""")
    e(f"""v_bfe_u32 {v(t+2)}, {v(vL)}, 1, 3
    v_xor_b32 {v(t+2)}, {v(t+2)}, {v(vH)}
    v_lshlrev_b32 {v(t+2)}, 4, {v(t+2)}
    v_lshl_add_u32 {v(t+2)}, {v(vE)}, 7, {v(t+2)}
    v_add_u32 {v(aBR)}, {s(sSTG)}, {v(t+2)}""")
    for k in range(1, 4):
        e(f"v_xor_b32 {v(aBR+k)}, {32*k}, {v(aBR)}")
    e(f"""v_lshrrev_b32 {v(t+2)}, 4, {v(vL)}
    v_xor_b32 {v(t+2)}, {v(t+2)}, {v(vL)}
    v_and_b32 {v(t+2)}, 7, {v(t+2)}
    v_lshlrev_b32 {v(IDX+1)}, 4, {v(t+2)}
    v_xor_b32 {v(IDX+3)}, 64, {v(IDX+1)}
    v_mov_b32 {v(IDX+5)}, {v(IDX+1)}
    v_mov_b32 {v(IDX+7)}, {v(IDX+3)}""")
    e(f"""v_mul_u32_u24 {v(t+2)}, {4*272}, {v(vH)}
    v_lshl_add_u32 {v(t+2)}, {v(vE)}, 3, {v(t+2)}
    v_add_u32 {v(aFMc)}, {MT}, {v(t+2)}
    v_bfe_u32 {v(t+2)}, {v(vL)}, 2, 2
    v_lshl_add_u32 {v(t+2)}, {v(vH)}, 2, {v(t+2)}
    v_mul_u32_u24 {v(t+2)}, 48, {v(t+2)}
    v_bfe_u32 {v(t+3)}, {v(vL)}, 4, 1
    v_lshl_add_u32 {v(t+2)}, {v(t+3)}, 3, {v(t+2)}
    v_add_u32 {v(aFPc)}, {PACC}, {v(t+2)}""")
    e(f"""v_lshlrev_b32 {v(t+2)}, 3, {v(vH)}
    v_sub_u32 {v(t+2)}, {v(vE)}, {v(t+2)}
    v_and_b32 {v(t+3)}, 1, {v(vL)}
    v_lshlrev_b32 {v(t+3)}, 4, {v(t+3)}
    v_lshlrev_b32 {v(t+3)}, {v(t+3)}, {v(vONE)}
    v_ashrrev_i32 {v(t+2)}, 1, {v(t+2)}""")
    for k in range(8):
        e(f"""v_cmp_eq_u32 vcc, {8*(k//4) + k%4}, {v(t+2)}
        s_nop 1
        v_cndmask_b32 {v(ID+k)}, 0, {v(t+3)}, vcc""")
    e("s_waitcnt vmcnt(15)")
    e("s_branch K2_nf2")
    e.label("K2_nf1")
    e("s_waitcnt vmcnt(0)")
    e.label("K2_nf2")
    prof("tab")
    vLC, vRA = t + 2, t + 3
    e(f"""v_lshrrev_b32 {v(vLC)}, 16, {v(vTAB)}
    v_subrev_u32 {v(vLC)}, {s(sOff)}, {v(vLC)}
    v_cmp_lt_i32 vcc, {s(sLim)}, {v(vLC)}
    v_min_i32 {v(vLC)}, {s(sLim)}, {v(vLC)}
    s_mov_b64 {s(sM,2)}, vcc
    v_and_b32 {v(t+4)}, 1, {v(vTID)}
    v_lshlrev_b32 {v(t+4)}, 4, {v(t+4)}
    v_sub_u32 {v(vLC)}, {v(vLC)}, {v(t+4)}
    v_and_b32 {v(vRA)}, 0xffff, {v(vTAB)}
    v_mul_u32_u24 {v(t+5)}, {CH*8}, {v(t)}
    s_add_u32 {s(sT0)}, {s(sOff)}, {hex(WS_REC)}
    v_add3_u32 {v(vRA)}, {v(vRA)}, {v(t+5)}, {v(t+4)}
    v_add_u32 {v(vRA)}, {s(sT0)}, {v(vRA)}
    v_mov_b32 {v(t+5)}, 0x7ffffff0""")
    for j in range(6):
        e(f"s_movk_i32 {s(sT0)}, {32*j}")
        e(f"v_cmp_lt_i32 {s(masks[2*j],2)}, {s(sT0)}, {v(vLC)}")
        e(f"s_movk_i32 {s(sT1)}, {32*j+8}")
        e(f"v_cmp_lt_i32 {s(masks[2*j+1],2)}, {s(sT1)}, {v(vLC)}")
        e(f"v_cndmask_b32 {v(t+8+j)}, {v(t+5)}, {v(vRA)}, {s(masks[2*j],2)}")
        e(f"buffer_load_dwordx4 {v(R0+4*j,4)}, {v(t+8+j)}, {s(rREC,4)}, 0 offen offset:{32*j}")
    e(f"""s_waitcnt vmcnt(6) lgkmcnt(0)
    s_barrier""")
    prof("bar1")
    e(f"""s_mov_b64 exec, {s(sM,2)}
    ds_write_b32 {v(vZ)}, {v(vONE)} offset:{FLAG}
    s_mov_b64 exec, -1
    s_cmp_eq_u32 {s(sFirst)}, 0
    s_cbranch_scc1 K2_nf3""")
    aH = t + 4

    def h_addr(dst, tmp, rot):
        e(f"""v_and_b32 {v(tmp)}, 15, {v(vL)}
        v_lshrrev_b32 {v(dst)}, 5, {v(vL)}
        v_xor_b32 {v(tmp)}, {v(tmp)}, {v(dst)}
        v_lshlrev_b32 {v(tmp)}, 4, {v(tmp)}
        v_and_b32 {v(dst)}, 31, {v(vL)}
        v_lshl_add_u32 {v(dst)}, {v(dst)}, 8, {v(tmp)}
        s_lshr_b32 {s(sT0)}, {s(sW)}, 2
        s_lshl_b32 {s(sT0)}, {s(sT0)}, 14""")
        if rot:
            e(f"""s_and_b32 {s(sT1)}, {s(sW)}, 3
            s_lshl_b32 {s(sT1)}, {s(sT1)}, 6
            s_or_b32 {s(sT0)}, {s(sT0)}, {s(sT1)}""")
        e(f"v_xor_b32 {v(dst)}, {s(sT0)}, {v(dst)}")

    def h_frags(a, tmp):
        for k in range(8):
            if k:
                e(f"v_xor_b32 {v(tmp)}, {32*k}, {v(a)}")
            x = tmp if k else a
            e(f"ds_read_b128 {v(HF0+4*k,4)}, {v(x)} offset:{HT}")
            e(f"ds_read_b128 {v(HF1+4*k,4)}, {v(x)} offset:{HT+8192}")

    h_addr(aH, t + 5, False)
    h_frags(aH, t + 5)
    aA = t + 5
    e(f"""s_and_b32 {s(sT1)}, {s(sW)}, 3
    s_mul_i32 {s(sT1)}, {s(sT1)}, {PLANE}
    s_lshr_b32 {s(sT0)}, {s(sW)}, 2
    s_lshl_b32 {s(sT0)}, {s(sT0)}, 12
    s_add_u32 {s(sT1)}, {s(sT1)}, {s(sT0)}
    s_add_u32 {s(sT1)}, {s(sT1)}, {AT}
    v_lshlrev_b32 {v(aA)}, 1, {v(vE)}
    v_lshl_add_u32 {v(aA)}, {v(vH)}, 8, {v(aA)}
    v_add_u32 {v(aA)}, {s(sT1)}, {v(aA)}""")
    for k in range(8):
        e(f"s_waitcnt lgkmcnt({14-2*k})")
        for r in range(2):
            a = GA + 16 * r
            e(f"{MFMA} {v(a,16)}, {v((HF0,HF1)[r]+4*k,4)}, {v(W1+4*k,4)}, {v(a,16) if k else 0}")
    e(f"""s_cmp_lt_u32 {s(sW)}, 6
    s_cbranch_scc1 K2_j4
    v_lshlrev_b32 {v(PSV)}, 16, {v(PSV)}
    v_lshlrev_b32 {v(PSV+1)}, 16, {v(PSV+1)}
    v_mul_f32 {v(PSV)}, {s(sC)}, {v(PSV)}
    v_mul_f32 {v(PSV+1)}, {s(sC)}, {v(PSV+1)}
    v_cvt_pk_bf16_f32 {v(PDV)}, {v(PSV)}, {v(PSV+1)}
    v_lshlrev_b32 {v(REC)}, 16, {v(PDV)}
    v_and_b32 {v(REC+1)}, 0xffff0000, {v(PDV)}
    v_sub_f32 {v(PSV)}, {v(PSV)}, {v(REC)}
    v_sub_f32 {v(PSV+1)}, {v(PSV+1)}, {v(REC+1)}
    v_cvt_pk_bf16_f32 {v(PDV+1)}, {v(PSV)}, {v(PSV+1)}
    v_bfe_u32 {v(REC)}, {v(vTID)}, 5, 2
    v_mul_u32_u24 {v(REC)}, {PLANE}, {v(REC)}
    v_lshl_add_u32 {v(REC)}, {v(vE)}, 1, {v(REC)}
    v_add_u32 {v(REC)}, {AT + NB*64}, {v(REC)}
    ds_write_b16 {v(REC)}, {v(PDV)}
    ds_write_b16 {v(REC)}, {v(PDV+1)} offset:64
    ds_write_b16_d16_hi {v(REC)}, {v(PDV)} offset:128
    ds_write_b16 {v(REC)}, {v(vZ)} offset:192
    ds_write_b16 {v(REC)}, {v(PDV)} offset:256
    ds_write_b16 {v(REC)}, {v(PDV+1)} offset:320
    ds_write_b16_d16_hi {v(REC)}, {v(PDV+1)} offset:384
    ds_write_b16 {v(REC)}, {v(vZ)} offset:448""")
    e.label("K2_j4")
    for k in range(4):
        e(f"v_lshlrev_b32 {v(WX+2*k+1)}, 16, {v(WX+2*k)}")
        e(f"v_lshlrev_b32 {v(WX+2*k)}, 16, {v(WX+2*k)}")
    e("s_nop 0")

    def a_out(r, npairs):
        a = GA + 16 * r
        for k in range(npairs):
            e(f"v_pk_mul_f32 {v(a+2*k,2)}, {v(a+2*k,2)}, {s(sC,2)}")
        for k in range(npairs):
            e(f"v_cvt_pk_bf16_f32 {v(a+2*k)}, {v(a+2*k)}, {v(a+2*k+1)}")
        for k in range(npairs):
            row = 32 * r + 8 * (k // 2) + 2 * (k % 2)
            e(f"ds_write_b16 {v(aA)}, {v(a+2*k)} offset:{row*64}")
            e(f"ds_write_b16_d16_hi {v(aA)}, {v(a+2*k)} offset:{row*64+64}")

    a_out(0, 8)
    e(f"""s_cmp_ge_u32 {s(sW)}, 4
    s_cbranch_scc1 K2_j5""")
    a_out(1, 8)
    e("s_branch K2_nf3")
    e.label("K2_j5")
    e("s_mov_b32 exec_hi, 0")
    a_out(1, 1)
    e("s_mov_b64 exec, -1")
    e.label("K2_nf3")
    prof("agemm")
    e(f"""v_mov_b32 {v(t+4)}, 8
    s_waitcnt vmcnt(0)""")
    prof("recs")
    for k in range(12):
        e(f"s_mov_b64 exec, {s(masks[k],2)}")
        if k % 2 == 0:
            e("s_cbranch_execz K2_rk")
        e(f"""v_lshrrev_b32 {v(CA+k)}, 18, {v(R0+2*k+1)}
        ds_add_rtn_u32 {v(RK+k)}, {v(CA+k)}, {v(t+4)} offset:{CNT}""")
    e.label("K2_rk")
    e(f"""s_mov_b64 exec, -1
    v_lshlrev_b32 {v(t+5)}, 3, {v(vL)}
    s_waitcnt lgkmcnt(0)
    s_barrier""")
    prof("bar2")
    e(f"""ds_read_b64 {v(t+8,2)}, {v(t+5)} offset:{CNT}
    ds_read_b32 {v(t+12)}, {v(vZ)} offset:{FLAG}
    s_waitcnt lgkmcnt(0)
    v_add_u32 {v(t+9)}, {v(t+8)}, {v(t+9)}
    v_mov_b32 {v(t+13)}, {v(t+9)}
    v_readfirstlane_b32 {s(sMore)}, {v(t+12)}""")
    scan64(e, t + 13)
    e(f"""v_sub_u32 {v(t+10)}, {v(t+13)}, {v(t+9)}
    v_readlane_b32 {s(sEnd8)}, {v(t+13)}, 63
    v_add_u32 {v(t+10)}, {LIST}, {v(t+10)}
    v_add_u32 {v(t+11)}, {v(t+10)}, {v(t+8)}
    ds_write_b64 {v(t+5)}, {v(t+10,2)} offset:{BASE}
    s_mov_b32 {s(sFirst)}, 0
    s_cmp_le_u32 {s(sEnd8)}, {CAP*8}
    s_cbranch_scc1 K2_fits
    s_cmp_eq_u32 {s(sLim)}, 64
    s_cbranch_scc1 K2_fits
    s_movk_i32 {s(sLim)}, 64
    s_waitcnt lgkmcnt(0)
    s_barrier
    s_branch K2_round""")
    e.label("K2_fits")
    for k in range(12):
        e(f"s_mov_b64 exec, {s(masks[k],2)}")
        if k % 2 == 0:
            e("s_cbranch_execz K2_pl1")
        e(f"ds_read_b32 {v(CA+k)}, {v(CA+k)} offset:{BASE}")
    e.label("K2_pl1")
    e(f"""s_mov_b64 exec, -1
    v_add_u32 {v(t+5)}, {s(sEnd8)}, {v(t+5)}
    v_add_u32 {v(t+5)}, {LIST}, {v(t+5)}
    v_mov_b32 {v(t+8)}, 0
    v_mov_b32 {v(t+9)}, 0
    ds_write_b64 {v(t+5)}, {v(t+8,2)}
    s_waitcnt lgkmcnt(0)""")
    for k in range(12):
        e(f"s_mov_b64 exec, {s(masks[k],2)}")
        if k % 2 == 0:
            e("s_cbranch_execz K2_pl2")
        e(f"""v_add_u32 {v(CA+k)}, {v(CA+k)}, {v(RK+k)}
        ds_write_b64 {v(CA+k)}, {v(R0+2*k,2)}""")
    e.label("K2_pl2")
    e(f"""s_mov_b64 exec, -1
    s_add_u32 {s(sT0)}, {s(sEnd8)}, 255
    s_lshr_b32 {s(sT0)}, {s(sT0)}, 8
    s_lshr_b32 {s(sT1)}, {s(sT0)}, 3
    s_and_b32 {s(sT0)}, {s(sT0)}, 7
    s_mul_i32 {s(sP8)}, {s(sT1)}, {s(sW)}
    s_min_u32 {s(sT2)}, {s(sW)}, {s(sT0)}
    s_add_u32 {s(sP8)}, {s(sP8)}, {s(sT2)}
    s_cmp_lt_u32 {s(sW)}, {s(sT0)}
    s_addc_u32 {s(sT1)}, {s(sT1)}, {s(sP8)}
    s_lshl_b32 {s(sP8)}, {s(sP8)}, 8
    s_lshl_b32 {s(sT1)}, {s(sT1)}, 8
    s_min_u32 {s(sEnd8)}, {s(sEnd8)}, {s(sT1)}
    s_add_u32 {s(sT0)}, {s(sP8)}, {LIST}
    v_and_b32 {v(aLP)}, 31, {v(vL)}
    v_lshl_add_u32 {v(aLP)}, {v(aLP)}, 3, {s(sT0)}
    v_and_b32 {v(aLQ)}, 0x38, {v(vL)}
    v_add_u32 {v(aLQ)}, {s(sT0)}, {v(aLQ)}
    s_movk_i32 {s(sBN)}, -1000
    s_movk_i32 {s(sBC)}, -1000
    s_waitcnt lgkmcnt(0)
    s_barrier""")
    prof("bar3")
    e(f"""s_cmp_ge_u32 {s(sP8)}, {s(sEnd8)}
    s_cbranch_scc1 K2_notiles""")

    uid = [0]

    def S0():
        uid[0] += 1
        u = uid[0]
        e(f"ds_read_b64 {v(REC,2)}, {v(aLP)}")
        e(f"ds_read_u16 {v(G)}, {v(aLP)}")
        for j in range(4):
            e(f"ds_read_u16 {v(IDX+2*j)}, {v(aLQ)} offset:{64*j}")
        e(f"""s_sub_u32 {s(sT0)}, {s(sEnd8)}, {s(sP8)}
        s_lshr_b32 {s(sT0)}, {s(sT0)}, 3
        s_min_u32 {s(sT0)}, {s(sT0)}, 32
        s_sub_u32 {s(sT1)}, {s(sT0)}, 1
        s_waitcnt lgkmcnt(4)
        v_readlane_b32 {s(sT1)}, {v(REC)}, {s(sT1)}
        v_add_u32_sdwa {v(vP)}, {v(aPDc)}, {v(REC+1)} dst_sel:DWORD dst_unused:UNUSED_PAD src0_sel:DWORD src1_sel:WORD_1
        buffer_load_dwordx2 {v(PSV,2)}, {v(G,2)}, {s(rPSI,4)}, 0 idxen offen
        ds_read_b64 {v(PDV,2)}, {v(vP)}
        s_lshr_b32 {s(sT1)}, {s(sT1)}, 16
        s_sub_u32 {s(sT1)}, {s(sT1)}, 16
        s_cmp_lt_i32 {s(sT1)}, {s(sBN)}
        s_cbranch_scc1 K2_s0_{u}
        v_readfirstlane_b32 {s(sT2)}, {v(REC)}
        s_lshr_b32 {s(sBN)}, {s(sT2)}, 16
        v_subrev_u32 {v(aIB)}, {s(sBN)}, {v(aIBc)}
        s_cmp_lt_i32 {s(sT1)}, {s(sBN)}
        s_cbranch_scc1 K2_s0_{u}
        s_add_u32 {s(sT1)}, {s(sBN)}, 16
        s_lshl_b32 {s(sT1)}, {s(sT1)}, 16
        v_cmp_gt_u32 vcc, {s(sT1)}, {v(REC)}
        s_bfm_b64 {s(sM,2)}, {s(sT0)}, 0
        s_and_b32 {s(sM)}, {s(sM)}, vcc_lo
        s_bcnt1_i32_b32 {s(sT0)}, {s(sM)}""")
        e.label(f"K2_s0_{u}")
        e(f"""s_bfm_b64 {s(sM,2)}, {s(sT0)}, 0
        s_lshl_b32 {s(sT0)}, {s(sT0)}, 3
        s_mov_b32 {s(sM+1)}, {s(sM)}
        s_add_u32 {s(sP8)}, {s(sP8)}, {s(sT0)}
        v_add_u32_sdwa {v(aIM)}, {v(aIB)}, {v(REC)} dst_sel:DWORD dst_unused:UNUSED_PAD src0_sel:DWORD src1_sel:WORD_1
        v_add_u32 {v(aLP)}, {s(sT0)}, {v(aLP)}
        v_add_u32 {v(aLQ)}, {s(sT0)}, {v(aLQ)}""")

    def DMA(half):
        for j in range(4):
            e(f"s_add_u32 m0, {s(sSTG)}, {1024*j}")
            e("s_nop 0")
            e(f"buffer_load_dwordx4 {v(IDX+2*j,2)}, {s(rBT,4)}, {s(s128) if half else 0} idxen offen lds")

    def RD():
        for k in range(4):
            e(f"ds_read_b128 {v(BR+4*k,4)}, {v(aBR+k)}")

    def AOP(tt):
        for u in range(2):
            e(f"ds_read_b64_tr_b16 {v(AO+2*u,2)}, {v(aAO)} offset:{tt*PLANE + 256*u}")

    def S1():
        e(f"""v_sub_f32 {v(PDV)}, {v(PDV)}, {v(PSV)}
        v_sub_f32 {v(PDV+1)}, {v(PDV+1)}, {v(PSV+1)}
        v_cvt_pk_bf16_f32 {v(vD)}, {v(PDV)}, {v(PDV+1)}
        v_dot2_f32_bf16 {v(vP)}, {v(vD)}, {v(vD)}, 0
        s_mov_b64 exec, {s(sM,2)}
        ds_write_b16 {v(aIM)}, {v(vD)}
        ds_write_b16_d16_hi {v(aIM)}, {v(vD)} offset:16
        v_cvt_pk_bf16_f32 {v(REC)}, {v(vP)}, {v(vP)}
        ds_write_b64 {v(aXT)}, {v(REC,2)} offset:64
        s_mov_b32 exec_hi, 0
        ds_write_b16 {v(aIM)}, {v(vONE)}
        s_mov_b64 exec, -1""")

    def rebase_ao():
        e(f"v_mad_u32_u24 {v(aAO)}, {v(vH32)}, {s(sBN)}, {v(aAOc)}")

    def S3():
        for k in range(4):
            e(f"ds_read_b64_tr_b16 {v(S4+2*k,2)}, {v(aS4)} offset:{80*8*k}")
        e(f"""s_mov_b64 exec, {s(sM,2)}
        ds_write_b16 {v(aIM)}, {v(vZ)}
        ds_write_b16 {v(aIM)}, {v(vZ)} offset:16
        s_mov_b64 exec, -1""")

    def xm(k, tt):
        if k < 2:
            b = BR + 8 * (tt & 1) + 4 * k
            e(f"{MFMA} {v(X,16)}, {v(b,4)}, {v(ID+4*k,4)}, {v(X,16) if k else 0}")
        else:
            e(f"{MFMA} {v(X,16)}, {v(SO,4)}, {v(AO,4)}, {v(X,16)}")

    OLD, aF0, aF1, aF2 = MP, MP + 2, MP + 3, MP + 4

    def flush_pre(base):
        e(f"""s_mul_i32 {s(sT0)}, {s(base)}, 136
        s_mul_i32 {s(sT1)}, {s(sW)}, 272
        s_add_u32 {s(sT1)}, {s(sT1)}, {NB*272}
        s_cmp_eq_u32 {s(base)}, {s(sFN)}
        s_cselect_b32 {s(sT1)}, {s(sT1)}, {s(sT0)}
        v_add_u32 {v(aF0)}, {s(sT1)}, {v(aFMc)}
        v_add_u32 {v(aF1)}, {s(sT0)}, {v(aFMc)}
        s_mul_i32 {s(sT0)}, {s(base)}, 24
        ds_read_b64 {v(OLD,2)}, {v(aF0)}
        v_add_u32 {v(aF2)}, {s(sT0)}, {v(aFPc)}""")

    def flush(base):
        A = lambda tt, r: ACC + 16 * tt + r
        for tt in range(4):
            for k in range(6):
                if tt == 0:
                    e(f"v_pk_mul_f32 {v(A(0,4+2*k),2)}, {v(A(0,4+2*k),2)}, {v(WX,2)}")
                else:
                    e(f"v_pk_fma_f32 {v(A(0,4+2*k),2)}, {v(A(tt,4+2*k),2)}, {v(WX+2*tt,2)}, {v(A(0,4+2*k),2)}")
        e(f"""s_waitcnt lgkmcnt(0)
        s_mov_b32 exec_hi, 0""")
        for tt in range(4):
            e(f"v_dot2_f32_bf16 {v(A(tt,0))}, {v(OLD+tt//2)}, {s((sK0,sK1)[tt&1])}, {v(A(tt,0))}")
        e("s_mov_b32 exec_hi, -1")
        Q = lambda c, i: A(1, 4 * c + i)
        for c in range(1, 4):
            for i in range(2):
                e(f"v_add_f32_dpp {v(Q(c,i))}, {v(A(0,4*c+i))}, {v(A(0,4*c+i))} row_ror:8 row_mask:0xf bank_mask:0x3")
        for c in range(1, 4):
            for i in range(2):
                e(f"v_add_f32_dpp {v(Q(c,i))}, {v(A(0,4*c+2+i))}, {v(A(0,4*c+2+i))} row_ror:8 row_mask:0xf bank_mask:0xc")
        P = lambda i: A(2, 4 + 2 * i)
        for i in range(4):
            for tp in range(2):
                e(f"v_cvt_pk_bf16_f32 {v(P(i)+tp)}, {v(A(2*tp,i))}, {v(A(2*tp+1,i))}")
        for c in range(1, 4):
            e(f"v_add_f32_dpp {v(Q(c,2))}, {v(Q(c,0))}, {v(Q(c,0))} row_half_mirror row_mask:0xf bank_mask:0x5")
        for c in range(1, 4):
            e(f"v_add_f32_dpp {v(Q(c,2))}, {v(Q(c,1))}, {v(Q(c,1))} row_half_mirror row_mask:0xf bank_mask:0xa")
        for c in range(1, 4):
            e(f"v_cvt_f64_f32 {v(Q(c,0),2)}, {v(Q(c,2))}")
        for c in range(1, 4):
            e(f"ds_add_f64 {v(aF2)}, {v(Q(c,0),2)} offset:{16*(c-1)}")
        e(f"""s_sub_u32 {s(sT0)}, {s(sLN)}, {s(base)}
        s_mov_b32 exec_hi, 0
        ds_write_b64 {v(aF0)}, {v(P(0),2)}""")
        for i in range(4):
            if i:
                e(f"s_cmp_ge_u32 {s(sT0)}, {2*i}")
                e("s_cselect_b32 exec_lo, -1, 0")
            else:
                e("s_mov_b32 exec_lo, 0")
            e(f"""s_cmp_ge_u32 {s(sT0)}, {8+2*i}
            s_cselect_b32 exec_hi, -1, 0
            ds_write_b64 {v(aF1)}, {v(P(i),2)} offset:{272*i}""")
        e("s_mov_b64 exec, -1")

    def wh_loads():
        e(f"""s_and_b32 {s(sT0)}, {s(sW)}, 3
        s_lshl_b32 {s(sT0)}, {s(sT0)}, 11
        v_lshlrev_b32 {v(IDX)}, 4, {v(vL)}
        v_add_u32 {v(IDX+2)}, 65536, {v(IDX)}
        v_add_u32 {v(IDX+4)}, {65536+4096}, {v(IDX)}
        v_add_u32 {v(IDX)}, 32768, {v(IDX)}
        v_xor_b32 {v(IDX)}, {s(sT0)}, {v(IDX)}""")
        for k in range(4):
            if k:
                e(f"v_xor_b32 {v(IDX+6)}, {2048*k}, {v(IDX)}")
            a = IDX + 6 if k else IDX
            e(f"global_load_dwordx4 {v(WH1+8*k,4)}, {v(a)}, {s(sWF,2)}")
            e(f"global_load_dwordx4 {v(WH1+8*k+4,4)}, {v(a)}, {s(sWF,2)} offset:1024")
        for k in range(8):
            e(f"global_load_dwordx4 {v(WH2+4*k,4)}, {v(IDX+2+2*(k//4))}, {s(sWF,2)} offset:{1024*(k%4)}")

    def unit(tt, nxt, tag):
        e(f"v_exp_f32 {v(T)}, {v(X)}")
        e("s_setprio 1")
        for i in range(1, 8):
            e(f"v_exp_f32 {v(T+i)}, {v(X+i)}")
        e("s_setprio 2")
        for i in range(8, 16):
            e(f"v_exp_f32 {v(T+i)}, {v(X+i)}")
        if tt == 0:
            e(f"""s_cmp_eq_u32 {s(sBP)}, {s(sBC)}
            s_cbranch_scc1 K2_nofl_{tag}
            s_cmp_lt_i32 {s(sBP)}, 0
            s_cbranch_scc1 K2_nofl_{tag}""")
            flush(sBP)
            e.label(f"K2_nofl_{tag}")
        for i in range(8):
            e(f"v_pk_fma_f32 {v(T+2*i,2)}, {v(T+2*i,2)}, {s(sC,2)}, {s(sC,2)}")
        for i in range(16):
            e(f"v_rcp_f32 {v(T+i)}, {v(T+i)}")
        for i in range(8):
            e(f"v_pk_mul_f32 {v(T+2*i,2)}, {v(T+2*i,2)}, {v(X+2*i,2)}")
        dox = tt < 3 or nxt
        e("s_waitcnt lgkmcnt(0)")
        if dox:
            xm(0, tt + 1)
        for i in range(8):
            e(f"v_cvt_pk_bf16_f32 {v(MP+i)}, {v(T+2*i)}, {v(T+2*i+1)}")
        e("s_setprio 3")
        if dox:
            xm(1, tt + 1)
            xm(2, tt + 1)
        a = ACC + 16 * tt
        e(f"""s_cmp_eq_u32 {s(sBP)}, {s(sBC)}
        s_cbranch_scc1 K2_acc_{tag}{tt}
        {MFMA} {v(a,16)}, {v(S4,4)}, {v(MP,4)}, 0
        s_branch K2_acd_{tag}{tt}""")
        e.label(f"K2_acc_{tag}{tt}")
        e(f"{MFMA} {v(a,16)}, {v(S4,4)}, {v(MP,4)}, {v(a,16)}")
        e.label(f"K2_acd_{tag}{tt}")
        e(f"{MFMA} {v(a,16)}, {v(S4+4,4)}, {v(MP+4,4)}, {v(a,16)}")

    def rotate_and_s0(pre):
        e(f"""s_mov_b32 {s(sBP)}, {s(sBC)}
        s_mov_b32 {s(sBC)}, {s(sBN)}""")
        if pre:
            e(f"""s_cmp_eq_u32 {s(sBP)}, {s(sBC)}
            s_cbranch_scc1 K2_nopre""")
            flush_pre(sBP)
            e.label("K2_nopre")
        e(f"""s_cmp_ge_u32 {s(sP8)}, {s(sEnd8)}
        s_cbranch_scc1 K2_last""")
        S0()

    e("s_setprio 3")
    e(f"""s_add_u32 {s(sT0)}, {s(sEnd8)}, {LIST - 6}
    v_mov_b32 {v(vD)}, {s(sT0)}
    ds_read_u16 {v(vD)}, {v(vD)}""")
    S0()
    e("s_waitcnt lgkmcnt(0)")
    DMA(0)
    e(f"""v_readfirstlane_b32 {s(sLN)}, {v(vD)}
    s_mov_b32 {s(sFN)}, {s(sBN)}
    s_cmp_lg_u32 {s(sLN)}, {s(sFN)}
    s_cbranch_scc1 K2_nohub
    ds_write_b32 {v(vZ)}, {v(vONE)} offset:{FLAG+4}""")
    e.label("K2_nohub")
    rebase_ao()
    AOP(0)
    e("s_waitcnt vmcnt(4)")
    S1()
    e(f"ds_read_b128 {v(SO,4)}, {v(aSO)}")
    e("s_waitcnt vmcnt(0)")
    RD()
    e("s_waitcnt lgkmcnt(0)")
    DMA(1)
    xm(0, 0); xm(1, 0); xm(2, 0)
    AOP(1)
    S3()
    prof("fill")
    rotate_and_s0(False)
    e(".p2align 6")
    e.label("K2_loop")
    e("s_setprio 0")
    unit(0, True, "a")
    e("s_waitcnt vmcnt(1)")
    RD()
    AOP(2)
    e("s_waitcnt lgkmcnt(2)")
    DMA(0)
    e("s_setprio 0")
    unit(1, True, "a")
    AOP(3)
    e("s_waitcnt vmcnt(4)")
    S1()
    e("s_setprio 0")
    unit(2, True, "a")
    e("s_waitcnt vmcnt(0)")
    RD()
    rebase_ao()
    AOP(0)
    e(f"ds_read_b128 {v(SO,4)}, {v(aSO)}")
    e("s_waitcnt lgkmcnt(3)")
    DMA(1)
    e("s_setprio 0")
    unit(3, True, "a")
    AOP(1)
    S3()
    rotate_and_s0(True)
    e("s_branch K2_loop")
    e.label("K2_last")
    prof("last")
    e("s_setprio 0")
    unit(0, False, "b")
    e("s_waitcnt vmcnt(0)")
    RD()
    AOP(2)
    wh_loads()
    e("s_setprio 0")
    unit(1, False, "b")
    AOP(3)
    e("s_nop 4")
    e("s_setprio 0")
    unit(2, False, "b")
    e("s_nop 6")
    e("s_setprio 0")
    unit(3, False, "b")
    flush_pre(sBC)
    e("s_setprio 0")
    flush(sBC)
    e("s_branch K2_post")
    e.label("K2_notiles")
    e(f"s_movk_i32 {s(sFN)}, -1")
    wh_loads()
    e.label("K2_post")
    prof("main")
    YA, YB, RA, RB = ACC, ACC + 16, ACC + 32, ACC + 48
    aH = IDX
    h_addr(aH, IDX + 2, True)
    h_frags(aH, IDX + 2)
    aM = IDX + 4
    e(f"""v_and_b32 {v(aM)}, 31, {v(vL)}
    v_mul_u32_u24 {v(aM)}, 272, {v(aM)}
    v_lshl_add_u32 {v(aM)}, {v(G+1)}, 1, {v(aM)}
    s_lshr_b32 {s(sT0)}, {s(sW)}, 2
    s_mul_i32 {s(sT0)}, {s(sT0)}, {64*272}
    s_add_u32 {s(sT0)}, {s(sT0)}, {MT}
    v_add_u32 {v(aM)}, {s(sT0)}, {v(aM)}
    s_waitcnt vmcnt(0) lgkmcnt(0)
    s_cmp_ge_u32 {s(sW)}, 4
    s_cbranch_scc1 K2_e1""")

    def gemm(W, first, small):
        for k in range(8):
            if not first:
                e(f"s_waitcnt lgkmcnt({14-2*k})")
            e(f"{MFMA} {v(YA,16)}, {v(W+4*k,4)}, {v(HF0+4*k,4)}, {v(YA,16) if (k or not first) else 0}")
            if small:
                e(f"{MFMA} {v(YB,16)}, {v(HF1+4*k,4)}, {v(W+4*k,4)}, {v(YB,16) if (k or not first) else 0}")
            else:
                e(f"{MFMA} {v(YB,16)}, {v(W+4*k,4)}, {v(HF1+4*k,4)}, {v(YB,16) if (k or not first) else 0}")
        if first:
            for k in range(2):
                e(f"{MFMA} {v(RA,16)}, {v(ID+4*k,4)}, {v(HF0+4*k,4)}, {v(RA,16) if k else 0}")
                if small:
                    e(f"{MFMA} {v(RB,16)}, {v(HF1+4*k,4)}, {v(ID+4*k,4)}, {v(RB,16) if k else 0}")
                else:
                    e(f"{MFMA} {v(RB,16)}, {v(ID+4*k,4)}, {v(HF1+4*k,4)}, {v(RB,16) if k else 0}")

    gemm(WH1, True, False)
    e("s_branch K2_e2")
    e.label("K2_e1")
    gemm(WH1, True, True)
    e.label("K2_e2")
    e("s_barrier")
    prof("bar4")
    e(f"""s_cmp_lt_i32 {s(sFN)}, 0
    s_cbranch_scc1 K2_fx2
    s_mul_i32 {s(sT0)}, {s(sFN)}, 136
    s_add_u32 {s(sT0)}, {s(sT0)}, {MT}
    s_mul_i32 {s(sT1)}, {s(sW)}, 272
    s_add_u32 {s(sT1)}, {s(sT1)}, {MT + NB*272}
    v_lshl_add_u32 {v(MP)}, {v(vL)}, 2, {s(sT0)}
    v_lshl_add_u32 {v(MP+1)}, {v(vL)}, 2, {s(sT1)}
    ds_read_b32 {v(MP+4)}, {v(vZ)} offset:{FLAG+4}
    ds_read_b32 {v(MP+2)}, {v(MP)}
    ds_read_b32 {v(MP+3)}, {v(MP+1)}
    s_waitcnt lgkmcnt(0)
    v_readfirstlane_b32 {s(sT0)}, {v(MP+4)}
    v_lshlrev_b32 {v(MP+5)}, 16, {v(MP+2)}
    v_and_b32 {v(MP+6)}, 0xffff0000, {v(MP+2)}
    s_cmp_eq_u32 {s(sT0)}, 0
    s_cbranch_scc1 K2_fx1
    ds_pk_add_bf16 {v(MP)}, {v(MP+3)}
    s_branch K2_fx2""")
    e.label("K2_fx1")
    e(f"""v_dot2_f32_bf16 {v(MP+5)}, {v(MP+3)}, {s(sK0)}, {v(MP+5)}
    v_dot2_f32_bf16 {v(MP+6)}, {v(MP+3)}, {s(sK1)}, {v(MP+6)}
    s_nop 2
    v_cvt_pk_bf16_f32 {v(MP+5)}, {v(MP+5)}, {v(MP+6)}
    ds_write_b32 {v(MP)}, {v(MP+5)}""")
    e.label("K2_fx2")
    e("""s_waitcnt lgkmcnt(0)
    s_barrier""")
    e(f"""s_cmp_eq_u32 {s(sMore)}, 0
    s_cbranch_scc1 K2_e3
    s_add_u32 {s(sOff)}, {s(sOff)}, {s(sLim)}
    s_nop 7
    s_branch K2_round""")
    e.label("K2_e3")
    for k in range(8):
        e(f"ds_read_b128 {v(HF0+4*k,4)}, {v(aM)} offset:{32*k}")
        e(f"ds_read_b128 {v(HF1+4*k,4)}, {v(aM)} offset:{32*k + 32*272}")
    rOUT = rH
    e(f"s_mov_b32 {s(sM)}, 1.0")
    e(f"s_mov_b32 {s(sM+1)}, 1.0")
    srd(e, rOUT, s(pOUT), s(pOUT + 1), N * 256)
    aRD, aST = IDX + 2, IDX + 6
    e(f"""v_lshrrev_b32 {v(aST)}, 2, {v(vL)}
    v_and_b32 {v(vD)}, 3, {v(vL)}
    v_lshlrev_b32 {v(vD)}, 4, {v(vD)}
    s_mul_i32 {s(sT1)}, {s(sW)}, 2560
    s_add_u32 {s(sT1)}, {s(sT1)}, {IMG}
    v_mul_u32_u24 {v(aRD)}, 80, {v(aST)}
    v_add3_u32 {v(aRD)}, {v(aRD)}, {v(vD)}, {s(sT1)}
    s_lshr_b32 {s(sT0)}, {s(sW)}, 2
    s_lshl_b32 {s(sT0)}, {s(sT0)}, 6
    s_add_u32 {s(sT0)}, {s(sT0)}, {s(sNB)}
    s_lshl_b32 {s(sT0)}, {s(sT0)}, 8
    s_and_b32 {s(sT1)}, {s(sW)}, 3
    s_lshl_b32 {s(sT1)}, {s(sT1)}, 6
    s_add_u32 {s(sT2)}, {s(sT0)}, {s(sT1)}
    v_lshl_add_u32 {v(aST)}, {v(aST)}, 8, {v(vD)}
    v_add_u32 {v(aST)}, {s(sT2)}, {v(aST)}
    s_cmp_ge_u32 {s(sW)}, 4
    s_cbranch_scc1 K2_e4""")

    def silu_out(Y, R, n):
        for i in range(n // 2):
            e(f"v_pk_mul_f32 {v(T+2*i,2)}, {v(Y+2*i,2)}, {s(sC,2)}")
        for i in range(n):
            e(f"v_exp_f32 {v(T+i)}, {v(T+i)}")
        if n == 2:
            e("s_nop 0")
        for i in range(n // 2):
            e(f"v_pk_add_f32 {v(T+2*i,2)}, {v(T+2*i,2)}, {s(sM,2)}")
        for i in range(n):
            e(f"v_rcp_f32 {v(T+i)}, {v(T+i)}")
        if n == 2:
            e("s_nop 0")
        for i in range(n // 2):
            e(f"v_pk_fma_f32 {v(T+2*i,2)}, {v(T+2*i,2)}, {v(Y+2*i,2)}, {v(R+2*i,2)}")
        for i in range(n // 2):
            e(f"v_cvt_pk_bf16_f32 {v(X+i)}, {v(T+2*i)}, {v(T+2*i+1)}")

    def out_tile(Y, R, rowoff, d):
        silu_out(Y, R, 16)
        for j in range(4):
            e(f"ds_write_b64 {v(aXT)}, {v(X+2*j,2)} offset:{16*j}")
        e(f"ds_read_b128 {v(d,4)}, {v(aRD)}")
        e(f"ds_read_b128 {v(d+4,4)}, {v(aRD)} offset:{16*80}")
        e(f"v_add_u32 {v(vD)}, {rowoff*256}, {v(aST)}")
        e(f"v_add_u32 {v(vP)}, {rowoff*256+4096}, {v(aST)}")
        e("s_waitcnt lgkmcnt(1)")
        e(f"buffer_store_dwordx4 {v(d,4)}, {v(vD)}, {s(rOUT,4)}, 0 offen")
        e("s_waitcnt lgkmcnt(0)")
        e(f"buffer_store_dwordx4 {v(d+4,4)}, {v(vP)}, {s(rOUT,4)}, 0 offen")

    gemm(WH2, False, False)
    e("s_nop 10")
    out_tile(YA, RA, 0, BR)
    out_tile(YB, RB, 32, BR + 8)
    e("s_branch K2_e5")
    e.label("K2_e4")
    gemm(WH2, False, True)
    e("s_nop 10")
    out_tile(YA, RA, 0, BR)
    silu_out(YB, RB, 2)
    e(f"""v_lshl_add_u32 {v(vD)}, {v(vL)}, 1, {s(sT2)}
    v_add_u32 {v(vD)}, {32*256}, {v(vD)}
    s_mov_b32 exec_hi, 0
    buffer_store_short {v(X)}, {v(vD)}, {s(rOUT,4)}, 0 offen
    buffer_store_short_d16_hi {v(X)}, {v(vD)}, {s(rOUT,4)}, 0 offen offset:256
    s_mov_b64 exec, -1""")
    e.label("K2_e5")
    e(f"""s_sub_u32 {s(sT0)}, {N}, {s(sNB)}
    s_min_u32 {s(sT0)}, {s(sT0)}, {NB}
    s_mul_i32 {s(sT0)}, {s(sT0)}, 3
    v_lshl_add_u32 {v(T)}, {s(sW)}, 6, {v(vL)}
    v_subrev_u32 {v(T)}, {512 - 3*NB}, {v(T)}
    v_cmp_gt_u32 vcc, {s(sT0)}, {v(T)}
    s_and_b64 exec, exec, vcc
    s_cbranch_execz K2_fin
    v_mul_u32_u24 {v(T+1)}, 0x5556, {v(T)}
    v_lshrrev_b32 {v(T+1)}, 16, {v(T+1)}
    v_add_u32 {v(T+1)}, {v(T+1)}, {v(T)}
    v_lshlrev_b32 {v(T+1)}, 2, {v(T+1)}
    v_add_u32 {v(T+2)}, {PD}, {v(T+1)}
    v_lshlrev_b32 {v(T+1)}, 4, {v(T)}
    v_add_u32 {v(T+1)}, {PACC}, {v(T+1)}
    ds_read_b32 {v(T+2)}, {v(T+2)} offset:4
    ds_read_b128 {v(T+4,4)}, {v(T+1)}
    s_mul_i32 {s(sT0)}, {s(sNB)}, 6
    s_add_u32 {s(sT0)}, {s(sT0)}, {N*256}
    v_lshl_add_u32 {v(T)}, {v(T)}, 1, {s(sT0)}
    s_waitcnt lgkmcnt(0)
    v_add_f64 {v(T+4,2)}, {v(T+4,2)}, {v(T+6,2)}
    v_cvt_f32_f64 {v(T+1)}, {v(T+4,2)}
    v_add_f32 {v(T+1)}, {v(T+1)}, {v(T+2)}
    v_cvt_pk_bf16_f32 {v(T+1)}, {v(T+1)}, {v(T+1)}
    global_store_short {v(T)}, {v(T+1)}, {s(pOUT,2)}""")
    e.label("K2_fin")
    if OPT["prof"]:
        e("s_mov_b64 exec, -1")
        prof("stores")
        e("s_waitcnt vmcnt(0)")
        prof("drained")
        prof.store(pWS, sW, 1, T + 4)
    e.label("K2_end")
    e("s_endpgm")
    return e, lds, nvgpr, prof.names


HEADER = """; EGNN layer (N=25000 nodes, E=400000 edges, D=128), bf16 in / bf16 out.  Generated by gen/gen.py.
"""


def kd(name, nv):
    return f""".amdhsa_kernel {name}
  .amdhsa_next_free_vgpr {nv}
  .amdhsa_next_free_sgpr 102
  .amdhsa_accum_offset {(nv + 3) // 4 * 4}
  .amdhsa_group_segment_fixed_size 0
  .amdhsa_kernarg_size 88
  .amdhsa_user_sgpr_count 2
  .amdhsa_user_sgpr_kernarg_segment_ptr 1
  .amdhsa_system_sgpr_workgroup_id_x 1
.end_amdhsa_kernel
"""


def main():
    a, lds1, nv1, pn1 = k1()
    b, lds2, nv2, pn2 = k2()
    for name, x in (("k1", a), ("k2", b)):
        for p in check_hazards(x.lines):
            print("HAZARD", name, p, file=sys.stderr)
    out = HEADER
    out += f"; @launch kernel=egnn_prep_kernel grid=({NWG},1,1) block=(512,1,1) lds={lds1}\n"
    out += f"; @launch kernel=egnn_main_kernel grid=({NWG},1,1) block=(512,1,1) lds={lds2}\n"
    if OPT["prof"]:
        out += f"; prof0 {' '.join(pn1)}\n"
    out += '.amdgcn_target "amdgcn-amd-amdhsa--gfx950"\n.text\n'
    for name, x in (("egnn_prep_kernel", a), ("egnn_main_kernel", b)):
        out += f".globl {name}\n.p2align 8\n.type {name},@function\n" + x.text()
    out += '.section .rodata,"a"\n.p2align 6\n' + kd("egnn_prep_kernel", nv1) + ".p2align 6\n" + kd("egnn_main_kernel", nv2)
    open(sys.argv[1], "w").write(out)
    print(f"lds {lds1} {lds2}  vgpr {nv1} {nv2}", file=sys.stderr)


main()
```

```python
import sys, struct
from asmlib import Asm, Alloc, v, s, check_hazards

N, E, NB, CH, NWG = 25000, 400000, 98, 1568, 256
WS_BT, WS_REC, WS_TAB, WS_PS, WS_WF, WS_PROF = 0, 0x640000, 0x980000, 0xA00000, 0xA80000, 0x1000000
NEG_LOG2E = struct.unpack("<I", struct.pack("<f", -1.4426950408889634))[0]
MFMA = "v_mfma_f32_32x32x16_bf16"

OPT = dict(prof=0, spin="")
for a in sys.argv[2:]:
    k, x = a.split("=")
    OPT[k] = x if k == "spin" else int(x, 0)


def srd(e, d, lo, hi, nrec, stride=0):
    e(f"s_mov_b32 {s(d)}, {lo}")
    if stride:
        e(f"s_or_b32 {s(d+1)}, {hi}, {hex(stride << 16)}")
    else:
        e(f"s_mov_b32 {s(d+1)}, {hi}")
    e(f"s_mov_b32 {s(d+2)}, {nrec}")
    e(f"s_mov_b32 {s(d+3)}, 0x20000")


def addptr(e, d, base, off):
    e(f"s_add_u32 {s(d)}, {s(base)}, {hex(off)}")
    e(f"s_addc_u32 {s(d+1)}, {s(base+1)}, 0")


def scan64(e, r):
    for m in ("row_shr:1 row_mask:0xf", "row_shr:2 row_mask:0xf", "row_shr:4 row_mask:0xf", "row_shr:8 row_mask:0xf",
              "row_bcast:15 row_mask:0xa", "row_bcast:31 row_mask:0xc"):
        e("s_nop 1")
        e(f"v_add_u32_dpp {v(r)}, {v(r)}, {v(r)} {m} bank_mask:0xf")


class Prof:
    def __init__(self, e, sbase, n, tag):
        self.e, self.sb, self.n, self.names, self.tag = e, sbase, n, [], tag

    def spin(self, ws, sW, tmp, last):
        e, sb = self.e, self.sb
        e(f"""s_mov_b64 exec, -1
        s_waitcnt vmcnt(0)""")
        self("drained")
        e(f"""s_or_b32 s3, {s(sW)}, s2
        s_cmp_lg_u32 s3, 0
        s_cbranch_scc1 K{self.tag}spin_end
        v_mov_b32 {v(tmp)}, {hex(WS_PROF)}""")
        if not last:
            e(f"""v_mov_b32 {v(tmp+2)}, {s(sb)}
            v_mov_b32 {v(tmp+3)}, {s(sb+4) if OPT["spin"].startswith(self.tag) else s(sb)}
            global_store_dwordx2 {v(tmp)}, {v(tmp+2,2)}, {s(ws,2)}""")
        else:
            if self.tag == "2":
                e(f"""global_load_dwordx2 {v(tmp+2,2)}, {v(tmp)}, {s(ws,2)}
                s_waitcnt vmcnt(0)
                v_readfirstlane_b32 {s(sb)}, {v(tmp+2)}""")
                if not OPT["spin"].startswith(self.tag):
                    e(f"v_readfirstlane_b32 {s(sb+4)}, {v(tmp+3)}")
            e(f"""s_nop 4
            s_add_u32 {s(sb+4)}, {s(sb+4)}, 6000
            s_mov_b32 {s(sb+5)}, 0""")
            e.label("spin_loop")
            e(f"""s_memrealtime {s(sb+2,2)}
            s_add_u32 {s(sb+5)}, {s(sb+5)}, 1
            s_cmp_gt_u32 {s(sb+5)}, 100000
            s_cbranch_scc1 K{self.tag}spin_end
            s_waitcnt lgkmcnt(0)
            s_sub_u32 {s(sb+2)}, {s(sb+2)}, {s(sb+4)}
            s_cmp_lt_i32 {s(sb+2)}, 0
            s_cbranch_scc1 spin_loop""")
        e.label(f"{self.tag}spin_end".replace("1s", "K1s").replace("2s", "K2s"))

    def __call__(self, name):
        if OPT["spin"]:
            if name == "start" or self.tag + name == OPT["spin"]:
                d = self.sb + (0 if name == "start" else 2)
                self.e(f"s_memrealtime {s(d, 2)}")
                if self.tag + name == OPT["spin"]:
                    self.e("s_waitcnt lgkmcnt(0)")
                    self.e(f"s_mov_b32 {s(self.sb + 4)}, {s(d)}")
            return
        if not OPT["prof"]:
            return
        i = len(self.names)
        assert i < self.n
        self.names.append(name)
        if i == 0:
            self.e(f"s_memrealtime {s(self.sb + self.n + 2, 2)}")
        self.e(f"s_memtime {s(self.sb + self.n, 2)}")
        self.e("s_waitcnt lgkmcnt(0)")
        self.e(f"s_mov_b32 {s(self.sb + i)}, {s(self.sb + self.n)}")

    def store(self, ws, sW, region, tmp):
        if not OPT["prof"]:
            return
        e = self.e
        e(f"s_memrealtime {s(self.sb + self.n, 2)}")
        e(f"s_lshl_b32 s3, s2, 3")
        e(f"s_add_u32 s3, s3, {s(sW)}")
        e(f"s_lshl_b32 s3, s3, 7")
        e(f"s_add_u32 s3, s3, {hex(WS_PROF + region * 0x100000)}")
        e("s_waitcnt lgkmcnt(0)")
        e(f"v_mov_b32 {v(tmp)}, s3")
        for i in range(len(self.names)):
            e(f"v_mov_b32 {v(tmp+1)}, {s(self.sb+i)}")
            e(f"global_store_dword {v(tmp)}, {v(tmp+1)}, {s(ws,2)} offset:{4*i}")
        e(f"v_mov_b32 {v(tmp+1)}, {s(self.sb+self.n)}")
        e(f"global_store_dword {v(tmp)}, {v(tmp+1)}, {s(ws,2)} offset:124")
        e(f"v_mov_b32 {v(tmp+1)}, {s(self.sb+self.n+2)}")
        e(f"global_store_dword {v(tmp)}, {v(tmp+1)}, {s(ws,2)} offset:120")


def k1():
    e = Asm()
    L = Alloc(0, 160 * 1024)
    CNT = L(1024, 16)
    BASE = L(1024, 16)
    RECS = L(CH * 8, 16)
    HT = L(25600, 256)
    W2 = L(32768, 256)
    OUT = L(128 * 272, 16)
    lds = L.p
    pH, pPOS, pEA, pSRC, pDST, pWE, pWX, pWH, pWS = 4, 6, 8, 10, 12, 14, 16, 18, 20
    rH, rWE = 24, 28
    sW, sE0, sLim, sNB, sT0, sT1, sC = 32, 33, 34, 35, 36, 37, 38
    sEM, sC2, sP = 40, 42, 44
    prof = Prof(e, 60, 16, "1")
    vL, vDST, vSRC, vEA, vCA, vRK, vREC = 1, 4, 8, 12, 16, 20, 24
    t = 32
    vWF, vHF, vACC = 64, 96, 160

    e.label("egnn_prep_kernel")
    e(f"""s_cmp_ge_u32 s2, {NWG}
    s_cbranch_scc1 K1_end
    s_load_dwordx16 s[4:19], s[0:1], 0
    s_load_dwordx2 s[20:21], s[0:1], 80""")
    prof("start")
    e(f"""v_lshrrev_b32 v2, 6, v0
    v_and_b32 {v(vL)}, 63, v0
    v_readfirstlane_b32 {s(sW)}, v2
    s_mul_i32 {s(sE0)}, s2, {CH}
    s_sub_u32 {s(sLim)}, {E}, {s(sE0)}
    s_lshr_b32 {s(sLim)}, {s(sLim)}, 2
    s_min_u32 {s(sLim)}, {s(sLim)}, {CH // 4}
    s_lshl_b32 {s(sT0)}, {s(sE0)}, 1
    v_lshl_add_u32 v3, v0, 3, {s(sT0)}
    v_lshlrev_b32 v2, 1, v3
    s_mul_i32 {s(sNB)}, s2, {NB}
    v_cmp_gt_u32 vcc, {s(sLim)}, v0
    s_and_b64 {s(sEM,2)}, vcc, exec
    s_mov_b64 exec, {s(sEM,2)}
    s_waitcnt lgkmcnt(0)
    s_cbranch_execz K1_noedge
    global_load_dwordx4 {v(vDST,4)}, v2, {s(pDST,2)}
    global_load_dwordx4 {v(vSRC,4)}, v2, {s(pSRC,2)}
    global_load_dwordx2 {v(vEA,2)}, v3, {s(pEA,2)}""")
    e.label("K1_noedge")
    prof("eld")
    e("s_mov_b64 exec, -1")
    srd(e, rH, s(pH), s(pH + 1), N * 256)
    srd(e, rWE, s(pWE), s(pWE + 1), 258 * 256)
    e(f"""v_lshrrev_b32 {v(t)}, 4, v0
    v_xor_b32 {v(t+1)}, {v(t)}, v0
    v_and_b32 {v(t+1)}, 15, {v(t+1)}
    v_add_u32 {v(t+2)}, {s(sNB)}, {v(t)}
    v_lshlrev_b32 {v(t+2)}, 8, {v(t+2)}
    v_lshl_add_u32 {v(t+2)}, {v(t+1)}, 4, {v(t+2)}
    v_lshlrev_b32 {v(t+3)}, 2, {v(t)}
    v_xor_b32 {v(t+3)}, {v(t+3)}, v0
    v_and_b32 {v(t+3)}, 15, {v(t+3)}
    v_lshlrev_b32 {v(t+4)}, 8, {v(t)}
    v_lshl_add_u32 {v(t+3)}, {v(t+3)}, 4, {v(t+4)}
    v_add_u32 {v(t+3)}, {128*256}, {v(t+3)}
    s_lshl_b32 {s(sT0)}, {s(sW)}, 10""")
    prof("addr")
    for k in range(3):
        e(f"""s_add_u32 m0, {s(sT0)}, {HT + 8192*k}
        v_add_u32 {v(t+5)}, {8192*k}, {v(t+2)}
        buffer_load_dwordx4 {v(t+5)}, {s(rH,4)}, 0 offen lds""")
    prof("hdma")
    for k in range(4):
        e(f"""s_add_u32 m0, {s(sT0)}, {W2 + 8192*k}
        v_add_u32 {v(t+5)}, {8192*k}, {v(t+3)}
        buffer_load_dwordx4 {v(t+5)}, {s(rWE,4)}, 0 offen lds""")
    e(f"""s_cmp_lg_u32 {s(sW)}, 0
    s_cbranch_scc1 K1_no4
    s_mov_b32 m0, {HT + 8192*3}
    v_add_u32 {v(t+5)}, {8192*3}, {v(t+2)}
    buffer_load_dwordx4 {v(t+5)}, {s(rH,4)}, 0 offen lds""")
    e.label("K1_no4")
    prof("wdma")
    e(f"""v_mov_b32 {v(t)}, 0
    v_lshlrev_b32 {v(t+1)}, 1, v0
    v_and_b32 {v(t+1)}, 0x3fc, {v(t+1)}
    ds_write_b32 {v(t+1)}, {v(t)} offset:{CNT}
    s_mov_b32 {s(sC)}, {hex(NEG_LOG2E)}
    s_mov_b32 {s(sC+1)}, {hex(NEG_LOG2E)}
    s_waitcnt lgkmcnt(0)
    s_barrier""")
    prof("bar1")
    e(f"""s_cmp_eq_u32 {s(sW)}, 7
    s_cbranch_scc1 K1_side
    s_mov_b64 exec, {s(sEM,2)}
    s_cbranch_execz K1_rank_done
    v_mov_b32 {v(t+8)}, 8
    s_movk_i32 {s(sT0)}, {-NB}
    s_waitcnt vmcnt(7)""")
    prof("edges")
    for i in range(4):
        e(f"""v_mul_u32_u24 {v(t+i)}, 21400, {v(vDST+i)}
        v_lshrrev_b32 {v(t+i)}, 21, {v(t+i)}
        v_lshlrev_b32 {v(vCA+i)}, 2, {v(t+i)}
        ds_add_rtn_u32 {v(vRK+i)}, {v(vCA+i)}, {v(t+8)} offset:{CNT}""")
    for i in range(4):
        e(f"v_mad_i32_i24 {v(t+i)}, {v(t+i)}, {s(sT0)}, {v(vDST+i)}")
        e(f"v_lshl_or_b32 {v(vREC+2*i)}, {v(t+i)}, 17, {v(vSRC+i)}")
        if i & 1:
            e(f"v_lshrrev_b32 {v(t+4)}, 16, {v(vEA+i//2)}")
        else:
            e(f"v_and_b32 {v(t+4)}, 0xffff, {v(vEA+i//2)}")
        e(f"v_lshl_or_b32 {v(vREC+2*i+1)}, {v(t+i)}, 20, {v(t+4)}")
    e("s_branch K1_rank_done")
    e.label("K1_side")
    e(f"""s_add_u32 {s(sT0)}, {s(sNB)}, {NB}
    s_min_u32 {s(sT0)}, {s(sT0)}, {N}""")
    addptr(e, sP, pWS, WS_PS)
    for i in range(8):
        e(f"v_mov_b32 {v(t+8+i)}, 0")
    e(f"""v_add_u32 {v(t)}, {s(sNB)}, {v(vL)}
    v_add_u32 {v(t+1)}, 64, {v(t)}
    v_mul_u32_u24 {v(t+2)}, 6, {v(t)}
    v_lshlrev_b32 {v(t+3)}, 4, {v(t)}
    v_cmp_gt_u32 vcc, {s(sT0)}, {v(t)}
    v_cmp_gt_u32 {s(sC2,2)}, {s(sT0)}, {v(t+1)}
    s_mov_b64 exec, vcc""")
    for i in range(3):
        e(f"global_load_ushort {v(t+9+i)}, {v(t+2)}, {s(pPOS,2)} offset:{2*i}")
    e(f"""s_mov_b64 exec, {s(sC2,2)}
    s_cbranch_execz K1_ps1""")
    for i in range(3):
        e(f"global_load_ushort {v(t+13+i)}, {v(t+2)}, {s(pPOS,2)} offset:{384+2*i}")
    e.label("K1_ps1")
    e(f"""s_mov_b64 exec, -1
    s_cmp_ge_u32 s2, 96
    s_cbranch_scc1 K1_nowf
    s_and_b32 {s(sT0)}, s2, 7
    s_bfe_u32 {s(sT1)}, s2, {hex((2 << 16) | 3)}
    s_lshl_b32 {s(sT1)}, {s(sT1)}, 6
    v_and_b32 {v(t+4)}, 31, {v(vL)}
    v_lshl_add_u32 {v(t+4)}, {v(t+4)}, 1, {s(sT1)}
    v_lshrrev_b32 {v(t+5)}, 5, {v(vL)}
    s_cmp_ge_u32 s2, 64
    s_cbranch_scc1 K1_wf2
    s_cmp_ge_u32 s2, 32
    s_cselect_b32 {s(sP+2)}, {s(pWH)}, {s(pWE)}
    s_cselect_b32 {s(sP+3)}, {s(pWH+1)}, {s(pWE+1)}
    s_lshl_b32 {s(sT0)}, {s(sT0)}, 12
    v_lshl_add_u32 {v(t+4)}, {v(t+5)}, 11, {v(t+4)}
    v_add_u32 {v(t+4)}, {s(sT0)}, {v(t+4)}""")
    for j in range(8):
        e(f"global_load_ushort {v(t+16+j//2+4*(j&1))}, {v(t+4)}, {s(sP+2,2)} offset:{256*j}")
    e("s_branch K1_wfst")
    e.label("K1_wf2")
    e(f"""s_lshl_b32 {s(sT0)}, {s(sT0)}, 10
    s_add_u32 {s(sT0)}, {s(sT0)}, {128*256}
    v_lshl_add_u32 {v(t+4)}, {v(t+5)}, 9, {v(t+4)}
    v_add_u32 {v(t+4)}, {s(sT0)}, {v(t+4)}
    v_add_u32 {v(t+5)}, 8192, {v(t+4)}
    v_add_u32 {v(t+6)}, 16384, {v(t+4)}
    v_add_u32 {v(t+7)}, 24576, {v(t+4)}""")
    for j in range(8):
        e(f"global_load_ushort {v(t+16+j//2+4*(j&1))}, {v(t+4+(j&3))}, {s(pWH,2)} offset:{256*(j//4)}")
    e.label("K1_wfst")
    e(f"""s_lshl_b32 {s(sT0)}, s2, 10
    s_add_u32 {s(sT0)}, {s(sT0)}, {hex(WS_WF)}
    v_lshl_add_u32 {v(t+4)}, {v(vL)}, 4, {s(sT0)}
    s_waitcnt vmcnt(0)""")
    for j in range(4):
        e(f"v_lshl_or_b32 {v(t+16+j)}, {v(t+20+j)}, 16, {v(t+16+j)}")
    e(f"global_store_dwordx4 {v(t+4)}, {v(t+16,4)}, {s(pWS,2)}")
    e.label("K1_nowf")
    e("s_waitcnt vmcnt(0)")
    for i in (1, 2, 3, 5, 6, 7):
        e(f"v_lshlrev_b32 {v(t+8+i)}, 16, {v(t+8+i)}")
    e(f"""global_store_dwordx4 {v(t+3)}, {v(t+8,4)}, {s(sP,2)}
    s_mov_b64 exec, {s(sC2,2)}
    s_cbranch_execz K1_rank_done
    global_store_dwordx4 {v(t+3)}, {v(t+12,4)}, {s(sP,2)} offset:1024""")
    e.label("K1_rank_done")
    e("s_mov_b64 exec, -1")
    aW, aH = t + 20, t + 21
    e(f"""s_and_b32 {s(sT0)}, {s(sW)}, 3
    s_lshr_b32 {s(sT1)}, {s(sW)}, 2
    v_bfe_u32 {v(t)}, {v(vL)}, 2, 2
    v_lshrrev_b32 {v(t+1)}, 5, {v(vL)}
    v_lshl_add_u32 {v(t+2)}, {v(t+1)}, 3, {v(t)}
    v_lshlrev_b32 {v(aW)}, 8, {v(t+2)}
    v_xor_b32 {v(t)}, {s(sT0)}, {v(t)}
    v_lshl_add_u32 {v(aW)}, {v(t)}, 6, {v(aW)}
    v_bfe_u32 {v(t)}, {v(vL)}, 4, 1
    v_lshl_add_u32 {v(aW)}, {v(t)}, 5, {v(aW)}
    v_and_b32 {v(t)}, 3, {v(vL)}
    v_lshl_add_u32 {v(aW)}, {v(t)}, 3, {v(aW)}
    v_add_u32 {v(aW)}, {W2}, {v(aW)}
    v_and_b32 {v(t)}, 31, {v(vL)}
    v_and_b32 {v(t+2)}, 15, {v(vL)}
    v_xor_b32 {v(t+2)}, {v(t+2)}, {v(t+1)}
    v_lshlrev_b32 {v(t+2)}, 4, {v(t+2)}
    v_lshl_add_u32 {v(aH)}, {v(t)}, 8, {v(t+2)}
    s_lshl_b32 {s(sC2)}, {s(sT1)}, 14
    v_add_u32 {v(aH)}, {s(sC2)}, {v(aH)}""")
    aO = t + 22
    e(f"""v_mul_u32_u24 {v(aO)}, 272, {v(t)}
    v_lshl_add_u32 {v(aO)}, {v(t+1)}, 3, {v(aO)}
    s_mul_i32 {s(sC2)}, {s(sT1)}, {64*272}
    s_lshl_b32 {s(sT0)}, {s(sT0)}, 6
    s_add_u32 {s(sC2)}, {s(sC2)}, {s(sT0)}
    s_add_u32 {s(sC2)}, {s(sC2)}, {OUT}
    v_add_u32 {v(aO)}, {s(sC2)}, {v(aO)}
    v_lshlrev_b32 {v(t+10)}, 4, {v(vL)}
    s_waitcnt vmcnt(0) lgkmcnt(0)
    s_barrier""")
    prof("bar2")
    c = t + 4
    e(f"ds_read_b128 {v(c,4)}, {v(t+10)} offset:{CNT}")
    for sidx in range(8):
        for u in range(2):
            e(f"ds_read_b64_tr_b16 {v(vWF+4*sidx+2*u,2)}, {v(aW)} offset:{(16*sidx+4*u)*256}")
    e(f"""s_waitcnt lgkmcnt(14)
    v_add_u32 {v(t+12)}, {v(c)}, {v(c+1)}
    v_add3_u32 {v(t+11)}, {v(t+12)}, {v(c+2)}, {v(c+3)}
    v_mov_b32 {v(t+9)}, {v(t+11)}""")
    scan64(e, t + 9)
    e(f"""v_sub_u32 {v(t+12)}, {v(t+9)}, {v(t+11)}
    v_add_u32 {v(t+13)}, {v(t+12)}, {v(c)}
    v_add_u32 {v(t+14)}, {v(t+13)}, {v(c+1)}
    v_add_u32 {v(t+15)}, {v(t+14)}, {v(c+2)}
    ds_write_b128 {v(t+10)}, {v(t+12,4)} offset:{BASE}
    s_cmp_lg_u32 {s(sW)}, 7
    s_cbranch_scc1 K1_notab""")
    for i in range(4):
        e(f"v_lshl_or_b32 {v(t+16+i)}, {v(c+i)}, 16, {v(t+12+i)}")
    e(f"""s_lshl_b32 {s(sT0)}, s2, 10
    s_add_u32 {s(sT0)}, {s(sT0)}, {hex(WS_TAB)}
    v_add_u32 {v(t+11)}, {s(sT0)}, {v(t+10)}
    global_store_dwordx4 {v(t+11)}, {v(t+16,4)}, {s(pWS,2)}""")
    e.label("K1_notab")
    prof("scan")
    e(f"s_mov_b64 exec, {s(sEM,2)}")
    for i in range(4):
        e(f"ds_read_b32 {v(t+i)}, {v(vCA+i)} offset:{BASE}")
    e("s_mov_b64 exec, -1")
    for sidx in range(8):
        if sidx:
            e(f"v_xor_b32 {v(t+23)}, {32*sidx}, {v(aH)}")
        a = aH if sidx == 0 else t + 23
        e(f"ds_read_b128 {v(vHF+4*sidx,4)}, {v(a)} offset:{HT}")
        e(f"ds_read_b128 {v(vHF+32+4*sidx,4)}, {v(a)} offset:{HT+8192}")
    e(f"""s_waitcnt lgkmcnt(14)
    s_mov_b64 exec, {s(sEM,2)}""")
    for i in range(4):
        e(f"v_add_u32 {v(t+i)}, {v(t+i)}, {v(vRK+i)}")
        e(f"ds_write_b64 {v(t+i)}, {v(vREC+2*i,2)} offset:{RECS}")
    e("s_mov_b64 exec, -1")
    e("s_waitcnt lgkmcnt(0)")
    prof("placed")
    for sidx in range(8):
        for r in range(2):
            a = vACC + 16 * r
            e(f"{MFMA} {v(a,16)}, {v(vWF+4*sidx,4)}, {v(vHF+32*r+4*sidx,4)}, {v(a,16) if sidx else 0}")
    e("s_nop 10")
    prof("mfma")
    for r in range(2):
        a = vACC + 16 * r
        for k in range(8):
            e(f"v_pk_mul_f32 {v(a+2*k,2)}, {v(a+2*k,2)}, {s(sC,2)}")
        for k in range(8):
            e(f"v_cvt_pk_bf16_f32 {v(vHF+8*r+k)}, {v(a+2*k)}, {v(a+2*k+1)}")
        for j in range(4):
            e(f"ds_write_b64 {v(aO)}, {v(vHF+8*r+2*j,2)} offset:{r*32*272 + 16*j}")
    e(f"""v_lshlrev_b32 {v(t)}, 4, v0
    v_lshrrev_b32 {v(t+1)}, 4, v0
    v_lshl_add_u32 {v(t+1)}, {v(t+1)}, 4, {v(t)}
    v_add_u32 {v(t+1)}, {OUT}, {v(t+1)}
    s_mul_i32 {s(sT0)}, s2, {CH*8}
    s_add_u32 {s(sT0)}, {s(sT0)}, {hex(WS_REC)}
    v_add_u32 {v(t+2)}, {s(sT0)}, {v(t)}
    v_add_u32 {v(t+3)}, 8192, {v(t+2)}
    s_lshl_b32 {s(sT0)}, {s(sNB)}, 8
    v_add_u32 {v(t+4)}, {s(sT0)}, {v(t)}
    v_add_u32 {v(t+5)}, 8192, {v(t+4)}
    v_add_u32 {v(t+6)}, 16384, {v(t+4)}
    v_add_u32 {v(t+7)}, 24576, {v(t+4)}
    s_movk_i32 {s(sT0)}, {CH*8//16 - 512}
    v_cmp_gt_u32 vcc, {s(sT0)}, v0
    s_waitcnt lgkmcnt(0)
    s_barrier""")
    prof("bar3")
    d = vWF
    e(f"ds_read_b128 {v(d,4)}, {v(t)} offset:{RECS}")
    e(f"ds_read_b128 {v(d+4,4)}, {v(t)} offset:{RECS+8192}")
    for k in range(4):
        e(f"ds_read_b128 {v(d+8+4*k,4)}, {v(t+1)} offset:{8704*k}")
    e(f"""s_waitcnt lgkmcnt(5)
    global_store_dwordx4 {v(t+2)}, {v(d,4)}, {s(pWS,2)}""")
    for k in range(3):
        e(f"s_waitcnt lgkmcnt({3-k})")
        e(f"global_store_dwordx4 {v(t+4+k)}, {v(d+8+4*k,4)}, {s(pWS,2)}")
    e(f"""s_mov_b64 exec, vcc
    s_cbranch_execz K1_fin
    global_store_dwordx4 {v(t+3)}, {v(d+4,4)}, {s(pWS,2)}
    s_cmp_lg_u32 {s(sW)}, 0
    s_cbranch_scc1 K1_fin
    s_mov_b32 exec_hi, 0
    s_waitcnt lgkmcnt(0)
    global_store_dwordx4 {v(t+7)}, {v(d+20,4)}, {s(pWS,2)}""")
    e.label("K1_fin")
    if OPT["prof"]:
        e("s_mov_b64 exec, -1")
        prof("stores")
        e("s_waitcnt vmcnt(0)")
        prof("drained")
        prof.store(pWS, sW, 0, t + 10)
    if OPT["spin"]:
        prof.spin(pWS, sW, t + 10, False)
    e.label("K1_end")
    e("s_endpgm")
    return e, lds, 192, prof.names


def k2():
    e = Asm()
    CAP = 2048
    L = Alloc(0, 160 * 1024)
    CNT = L(512, 16)
    BASE = L(512, 16)
    FLAG = L(16, 16)
    HT = L(25600, 256)
    STG = L(8 * 4096, 256)
    PLANE = 106 * 64
    AT = L(4 * PLANE, 16)
    Z0 = L(0, 16)
    MT = L(106 * 272, 16)
    PACC = L(105 * 48, 16)
    IMG = L(8 * 2560, 16)
    Z1 = L(0, 16)
    LIST = L((CAP + 64) * 8, 16)
    PD = L(2048, 16)
    lds = L.p
    assert Z1 - Z0 <= 7 * 8192 and Z0 + 7 * 8192 <= PD

    S = Alloc(4, 102)
    pH = S(2, 4); pPOS = S(2); pEA = S(2); pSRC = S(2); pDST = S(2); pWE = S(2); pWX = S(2); pWH = S(2)
    pOUT = S(2, 4); pDBG = S(2); pWS = S(2)
    rH = S(4, 4); rREC = S(4, 4); rBT = S(4, 4); rPSI = S(4, 4)
    rPS = rREC
    sW = S(); sNB = S(); sOff = S(); sLim = S(); sFirst = S(); sT0 = S(); sT1 = S(); sT2 = S()
    sC = S(2, 2); sM = S(2, 2); sWF = S(2, 2)
    sP8 = S(); sEnd8 = S(); sBN = S(); sBC = S(); sBP = S(); sSTG = S(); s128 = S(); sMore = S(); sFN = S(); sLN = S()
    sK0 = pDBG; sK1 = pDBG + 1
    sMK = pPOS
    masks = [pPOS, pEA, pSRC, pDST] + [S(2, 2) for _ in range(8)]
    prof = Prof(e, S(18, 2), 14, "2")

    V = Alloc(0, 256)
    ACC = V(64)
    X = V(16); T = V(16)
    BR = V(16); AO = V(4); SO = V(4); S4 = V(8)
    MP = V(8); ID = V(8)
    IDX = V(8); G = V(2); REC = V(2); PSV = V(2); PDV = V(2); WX = V(8)
    aBR = V(4); aSO = V(); aS4 = V(); aAO = V(); aAOc = V(); vH32 = V(); aLP = V(); aLQ = V()
    aIM = V(); aIB = V(); aIBc = V(); aXT = V(); aPDc = V(); vD = V(); vP = V(); vONE = V(); vZ = V()
    aFMc = V(); aFPc = V(); aF = vD; vL = V()
    vTID = MP
    WH1 = V(32, 2); WH2 = V(32, 2)
    nvgpr = V.p

    R0 = ACC
    CA = ACC + 24
    RK = ACC + 36
    t = ACC + 48
    W1 = WH1
    HF0, HF1 = X, BR
    GA = WH2

    e.label("egnn_main_kernel")
    e(f"""s_cmp_ge_u32 s2, {NWG}
    s_cbranch_scc1 K2_end
    s_load_dwordx16 {s(pH,16)}, s[0:1], 0
    s_load_dwordx4 {s(pOUT,4)}, s[0:1], 64
    s_load_dwordx2 {s(pWS,2)}, s[0:1], 80""")
    prof("start")
    e(f"""v_and_b32 {v(vL)}, 63, v0
    v_lshrrev_b32 {v(t)}, 6, v0
    s_mul_i32 {s(sNB)}, s2, {NB}
    v_readfirstlane_b32 {s(sW)}, {v(t)}
    s_mov_b32 {s(sOff)}, 0
    s_mov_b32 {s(sLim)}, {24*8}
    s_mov_b32 {s(sFirst)}, 1
    s_mov_b32 {s(sC)}, {hex(NEG_LOG2E)}
    s_mov_b32 {s(sC+1)}, {hex(NEG_LOG2E)}
    s_movk_i32 {s(s128)}, 128
    s_waitcnt lgkmcnt(0)
    s_movk_i32 {s(sK0)}, 0x3f80
    s_mov_b32 {s(sK1)}, 0x3f800000""")
    srd(e, rREC, s(pWS), s(pWS + 1), hex(WS_PROF))
    e.label("K2_round")
    vTAB = t + 15
    e(f"""v_lshl_add_u32 {v(vTID)}, {s(sW)}, 6, {v(vL)}
    v_lshrrev_b32 {v(t)}, 1, {v(vTID)}
    s_lshl_b32 {s(sT0)}, s2, 2
    s_add_u32 {s(sT0)}, {s(sT0)}, {hex(WS_TAB)}
    v_lshl_add_u32 {v(t+1)}, {v(t)}, 10, {s(sT0)}
    global_load_dword {v(vTAB)}, {v(t+1)}, {s(pWS,2)}
    v_mov_b32 {v(vZ)}, 0
    v_and_b32 {v(t+1)}, 0x1fc, {v(vTID)}
    ds_write_b32 {v(t+1)}, {v(vZ)} offset:{CNT}
    ds_write_b32 {v(vZ)}, {v(vZ)} offset:{FLAG}
    ds_write_b32 {v(vZ)}, {v(vZ)} offset:{FLAG+4}
    s_cmp_eq_u32 {s(sFirst)}, 0
    s_cbranch_scc1 K2_nf1""")
    srd(e, rH, s(pH), s(pH + 1), N * 256)
    e(f"""v_lshrrev_b32 {v(t+2)}, 4, {v(vTID)}
    v_xor_b32 {v(t+3)}, {v(t+2)}, {v(vTID)}
    v_and_b32 {v(t+3)}, 15, {v(t+3)}
    v_add_u32 {v(t+2)}, {s(sNB)}, {v(t+2)}
    v_lshlrev_b32 {v(t+2)}, 8, {v(t+2)}
    v_lshl_add_u32 {v(t+2)}, {v(t+3)}, 4, {v(t+2)}
    s_lshl_b32 {s(sT0)}, {s(sW)}, 10""")
    for k in range(3):
        e(f"""s_add_u32 m0, {s(sT0)}, {HT + 8192*k}
        v_add_u32 {v(t+3)}, {8192*k}, {v(t+2)}
        buffer_load_dwordx4 {v(t+3)}, {s(rH,4)}, 0 offen lds""")
    e(f"""s_and_b32 {s(sT1)}, {s(sW)}, 3
    s_lshl_b32 {s(sT1)}, {s(sT1)}, 13
    s_add_u32 {s(sT1)}, {s(sT1)}, {hex(WS_WF)}
    s_add_u32 {s(sWF)}, {s(pWS)}, {s(sT1)}
    s_addc_u32 {s(sWF+1)}, {s(pWS+1)}, 0
    v_lshlrev_b32 {v(t+4)}, 4, {v(vL)}
    v_add_u32 {v(t+5)}, 4096, {v(t+4)}""")
    for k in range(8):
        e(f"global_load_dwordx4 {v(W1+4*k,4)}, {v(t+4+k//4)}, {s(sWF,2)} offset:{1024*(k%4)}")
    e(f"""v_and_b32 {v(t+6)}, 31, {v(vL)}
    v_lshlrev_b32 {v(t+7)}, 1, {v(t+6)}""")
    for k in range(4):
        e(f"global_load_ushort {v(WX+2*k)}, {v(t+7)}, {s(pWX,2)} offset:{64*k}")
    e(f"""s_cmp_lg_u32 {s(sW)}, 0
    s_cbranch_scc1 K2_j1
    s_mov_b32 m0, {HT + 8192*3}
    v_add_u32 {v(t+3)}, {8192*3}, {v(t+2)}
    buffer_load_dwordx4 {v(t+3)}, {s(rH,4)}, 0 offen lds
    s_branch K2_j3""")
    e.label("K2_j1")
    e(f"""s_cmp_gt_u32 {s(sW)}, 2
    s_cbranch_scc1 K2_j2
    s_add_u32 m0, {s(sT0)}, {PD - 1024}
    s_lshl_b32 {s(sT1)}, {s(sNB)}, 4
    s_add_u32 {s(sT1)}, {s(sT1)}, {hex(WS_PS - 1024)}
    v_lshl_add_u32 {v(t+3)}, {v(vTID)}, 4, {s(sT1)}
    buffer_load_dwordx4 {v(t+3)}, {s(rPS,4)}, 0 offen lds
    s_branch K2_j3""")
    e.label("K2_j2")
    e(f"""s_cmp_lt_u32 {s(sW)}, 6
    s_cbranch_scc1 K2_j3
    v_lshlrev_b32 {v(t+3)}, 1, {v(vTID)}
    v_add_u32 {v(t+3)}, {256*256 - 768}, {v(t+3)}
    global_load_ushort {v(PSV)}, {v(t+3)}, {s(pWE,2)}
    global_load_ushort {v(PSV+1)}, {v(t+3)}, {s(pWE,2)} offset:256""")
    e.label("K2_j3")
    for k in range(4):
        e(f"v_mov_b32 {v(t+8+k)}, 0")
    e(f"""v_lshlrev_b32 {v(t+3)}, 4, {v(vTID)}
    v_add_u32 {v(t+3)}, {Z0}, {v(t+3)}""")
    for k in range(7):
        e(f"ds_write_b128 {v(t+3)}, {v(t+8,4)} offset:{8192*k}")
    srd(e, rBT, s(pWS), s(pWS + 1), N, stride=256)
    addptr(e, rPSI, pWS, WS_PS)
    e(f"""s_or_b32 {s(rPSI+1)}, {s(rPSI+1)}, {hex(16 << 16)}
    s_mov_b32 {s(rPSI+2)}, {N}
    s_mov_b32 {s(rPSI+3)}, 0x20000""")
    vE, vH = t + 6, t + 7
    e(f"""v_lshrrev_b32 {v(vH)}, 5, {v(vL)}
    s_mul_i32 {s(sT1)}, {s(sW)}, 2560
    s_add_u32 {s(sT1)}, {s(sT1)}, {IMG}
    s_lshl_b32 {s(sSTG)}, {s(sW)}, 12
    s_add_u32 {s(sSTG)}, {s(sSTG)}, {STG}
    v_mul_u32_u24 {v(t+2)}, 80, {v(vE)}
    v_add_u32 {v(t+2)}, {s(sT1)}, {v(t+2)}
    v_lshl_add_u32 {v(aIBc)}, {v(vH)}, 5, {v(t+2)}
    v_lshl_add_u32 {v(aSO)}, {v(vH)}, 6, {v(t+2)}
    v_lshl_add_u32 {v(aXT)}, {v(vH)}, 3, {v(t+2)}
    v_lshlrev_b32 {v(G+1)}, 3, {v(vH)}
    v_add_u32 {v(aPDc)}, {PD}, {v(G+1)}
    v_mov_b32 {v(vONE)}, 0x3f80
    v_bfe_u32 {v(t+2)}, {v(vL)}, 2, 2
    v_bfe_u32 {v(t+3)}, {v(vL)}, 4, 1
    v_and_b32 {v(t+4)}, 3, {v(vL)}
    v_lshlrev_b32 {v(t+4)}, 3, {v(t+4)}
    v_lshl_add_u32 {v(t+4)}, {v(t+3)}, 5, {v(t+4)}
    v_lshl_add_u32 {v(t+5)}, {v(vH)}, 2, {v(t+2)}
    v_mul_u32_u24 {v(t+5)}, 80, {v(t+5)}
    v_add3_u32 {v(aS4)}, {v(t+5)}, {v(t+4)}, {s(sT1)}
    v_mul_u32_u24 {v(t+5)}, {NB}, {v(vH)}
    v_add_u32 {v(t+5)}, {v(t+5)}, {v(t+2)}
    v_lshl_add_u32 {v(t+5)}, {v(t+5)}, 6, {v(t+4)}
    v_add_u32 {v(aAOc)}, {AT}, {v(t+5)}
    v_lshlrev_b32 {v(vH32)}, 5, {v(vH)}
    v_sub_u32 {v(vH32)}, 32, {v(vH32)}""")
    e(f"""v_bfe_u32 {v(t+2)}, {v(vL)}, 1, 3
    v_xor_b32 {v(t+2)}, {v(t+2)}, {v(vH)}
    v_lshlrev_b32 {v(t+2)}, 4, {v(t+2)}
    v_lshl_add_u32 {v(t+2)}, {v(vE)}, 7, {v(t+2)}
    v_add_u32 {v(aBR)}, {s(sSTG)}, {v(t+2)}""")
    for k in range(1, 4):
        e(f"v_xor_b32 {v(aBR+k)}, {32*k}, {v(aBR)}")
    e(f"""v_lshrrev_b32 {v(t+2)}, 4, {v(vL)}
    v_xor_b32 {v(t+2)}, {v(t+2)}, {v(vL)}
    v_and_b32 {v(t+2)}, 7, {v(t+2)}
    v_lshlrev_b32 {v(IDX+1)}, 4, {v(t+2)}
    v_xor_b32 {v(IDX+3)}, 64, {v(IDX+1)}
    v_mov_b32 {v(IDX+5)}, {v(IDX+1)}
    v_mov_b32 {v(IDX+7)}, {v(IDX+3)}""")
    e(f"""v_mul_u32_u24 {v(t+2)}, {4*272}, {v(vH)}
    v_lshl_add_u32 {v(t+2)}, {v(vE)}, 3, {v(t+2)}
    v_add_u32 {v(aFMc)}, {MT}, {v(t+2)}
    v_bfe_u32 {v(t+2)}, {v(vL)}, 2, 2
    v_lshl_add_u32 {v(t+2)}, {v(vH)}, 2, {v(t+2)}
    v_mul_u32_u24 {v(t+2)}, 48, {v(t+2)}
    v_bfe_u32 {v(t+3)}, {v(vL)}, 4, 1
    v_lshl_add_u32 {v(t+2)}, {v(t+3)}, 3, {v(t+2)}
    v_add_u32 {v(aFPc)}, {PACC}, {v(t+2)}""")
    e(f"""v_lshlrev_b32 {v(t+2)}, 3, {v(vH)}
    v_sub_u32 {v(t+2)}, {v(vE)}, {v(t+2)}
    v_and_b32 {v(t+3)}, 1, {v(vL)}
    v_lshlrev_b32 {v(t+3)}, 4, {v(t+3)}
    v_lshlrev_b32 {v(t+3)}, {v(t+3)}, {v(vONE)}
    v_ashrrev_i32 {v(t+2)}, 1, {v(t+2)}""")
    for k in range(8):
        e(f"""v_cmp_eq_u32 vcc, {8*(k//4) + k%4}, {v(t+2)}
        s_nop 1
        v_cndmask_b32 {v(ID+k)}, 0, {v(t+3)}, vcc""")
    e("s_waitcnt vmcnt(15)")
    e("s_branch K2_nf2")
    e.label("K2_nf1")
    e("s_waitcnt vmcnt(0)")
    e.label("K2_nf2")
    prof("tab")
    vLC, vRA = t + 2, t + 3
    e(f"""v_lshrrev_b32 {v(vLC)}, 16, {v(vTAB)}
    v_subrev_u32 {v(vLC)}, {s(sOff)}, {v(vLC)}
    v_cmp_lt_i32 vcc, {s(sLim)}, {v(vLC)}
    v_min_i32 {v(vLC)}, {s(sLim)}, {v(vLC)}
    s_mov_b64 {s(sM,2)}, vcc
    v_and_b32 {v(t+4)}, 1, {v(vTID)}
    v_lshlrev_b32 {v(t+4)}, 4, {v(t+4)}
    v_sub_u32 {v(vLC)}, {v(vLC)}, {v(t+4)}
    v_and_b32 {v(vRA)}, 0xffff, {v(vTAB)}
    v_mul_u32_u24 {v(t+5)}, {CH*8}, {v(t)}
    s_add_u32 {s(sT0)}, {s(sOff)}, {hex(WS_REC)}
    v_add3_u32 {v(vRA)}, {v(vRA)}, {v(t+5)}, {v(t+4)}
    v_add_u32 {v(vRA)}, {s(sT0)}, {v(vRA)}
    v_mov_b32 {v(t+5)}, 0x7ffffff0""")
    for j in range(6):
        e(f"s_movk_i32 {s(sT0)}, {32*j}")
        e(f"v_cmp_lt_i32 {s(masks[2*j],2)}, {s(sT0)}, {v(vLC)}")
        e(f"s_movk_i32 {s(sT1)}, {32*j+8}")
        e(f"v_cmp_lt_i32 {s(masks[2*j+1],2)}, {s(sT1)}, {v(vLC)}")
        e(f"v_cndmask_b32 {v(t+8+j)}, {v(t+5)}, {v(vRA)}, {s(masks[2*j],2)}")
        e(f"buffer_load_dwordx4 {v(R0+4*j,4)}, {v(t+8+j)}, {s(rREC,4)}, 0 offen offset:{32*j}")
    e(f"""s_waitcnt vmcnt(6) lgkmcnt(0)
    s_barrier""")
    prof("bar1")
    e(f"""s_mov_b64 exec, {s(sM,2)}
    ds_write_b32 {v(vZ)}, {v(vONE)} offset:{FLAG}
    s_mov_b64 exec, -1
    s_cmp_eq_u32 {s(sFirst)}, 0
    s_cbranch_scc1 K2_nf3""")
    aH = t + 4

    def h_addr(dst, tmp, rot):
        e(f"""v_and_b32 {v(tmp)}, 15, {v(vL)}
        v_lshrrev_b32 {v(dst)}, 5, {v(vL)}
        v_xor_b32 {v(tmp)}, {v(tmp)}, {v(dst)}
        v_lshlrev_b32 {v(tmp)}, 4, {v(tmp)}
        v_and_b32 {v(dst)}, 31, {v(vL)}
        v_lshl_add_u32 {v(dst)}, {v(dst)}, 8, {v(tmp)}
        s_lshr_b32 {s(sT0)}, {s(sW)}, 2
        s_lshl_b32 {s(sT0)}, {s(sT0)}, 14""")
        if rot:
            e(f"""s_and_b32 {s(sT1)}, {s(sW)}, 3
            s_lshl_b32 {s(sT1)}, {s(sT1)}, 6
            s_or_b32 {s(sT0)}, {s(sT0)}, {s(sT1)}""")
        e(f"v_xor_b32 {v(dst)}, {s(sT0)}, {v(dst)}")

    def h_frags(a, tmp):
        for k in range(8):
            if k:
                e(f"v_xor_b32 {v(tmp)}, {32*k}, {v(a)}")
            x = tmp if k else a
            e(f"ds_read_b128 {v(HF0+4*k,4)}, {v(x)} offset:{HT}")
            e(f"ds_read_b128 {v(HF1+4*k,4)}, {v(x)} offset:{HT+8192}")

    h_addr(aH, t + 5, False)
    h_frags(aH, t + 5)
    aA = t + 5
    e(f"""s_and_b32 {s(sT1)}, {s(sW)}, 3
    s_mul_i32 {s(sT1)}, {s(sT1)}, {PLANE}
    s_lshr_b32 {s(sT0)}, {s(sW)}, 2
    s_lshl_b32 {s(sT0)}, {s(sT0)}, 12
    s_add_u32 {s(sT1)}, {s(sT1)}, {s(sT0)}
    s_add_u32 {s(sT1)}, {s(sT1)}, {AT}
    v_lshlrev_b32 {v(aA)}, 1, {v(vE)}
    v_lshl_add_u32 {v(aA)}, {v(vH)}, 8, {v(aA)}
    v_add_u32 {v(aA)}, {s(sT1)}, {v(aA)}""")
    for k in range(8):
        e(f"s_waitcnt lgkmcnt({14-2*k})")
        for r in range(2):
            a = GA + 16 * r
            e(f"{MFMA} {v(a,16)}, {v((HF0,HF1)[r]+4*k,4)}, {v(W1+4*k,4)}, {v(a,16) if k else 0}")
    e(f"""s_cmp_lt_u32 {s(sW)}, 6
    s_cbranch_scc1 K2_j4
    v_lshlrev_b32 {v(PSV)}, 16, {v(PSV)}
    v_lshlrev_b32 {v(PSV+1)}, 16, {v(PSV+1)}
    v_mul_f32 {v(PSV)}, {s(sC)}, {v(PSV)}
    v_mul_f32 {v(PSV+1)}, {s(sC)}, {v(PSV+1)}
    v_cvt_pk_bf16_f32 {v(PDV)}, {v(PSV)}, {v(PSV+1)}
    v_lshlrev_b32 {v(REC)}, 16, {v(PDV)}
    v_and_b32 {v(REC+1)}, 0xffff0000, {v(PDV)}
    v_sub_f32 {v(PSV)}, {v(PSV)}, {v(REC)}
    v_sub_f32 {v(PSV+1)}, {v(PSV+1)}, {v(REC+1)}
    v_cvt_pk_bf16_f32 {v(PDV+1)}, {v(PSV)}, {v(PSV+1)}
    v_bfe_u32 {v(REC)}, {v(vTID)}, 5, 2
    v_mul_u32_u24 {v(REC)}, {PLANE}, {v(REC)}
    v_lshl_add_u32 {v(REC)}, {v(vE)}, 1, {v(REC)}
    v_add_u32 {v(REC)}, {AT + NB*64}, {v(REC)}
    ds_write_b16 {v(REC)}, {v(PDV)}
    ds_write_b16 {v(REC)}, {v(PDV+1)} offset:64
    ds_write_b16_d16_hi {v(REC)}, {v(PDV)} offset:128
    ds_write_b16 {v(REC)}, {v(vZ)} offset:192
    ds_write_b16 {v(REC)}, {v(PDV)} offset:256
    ds_write_b16 {v(REC)}, {v(PDV+1)} offset:320
    ds_write_b16_d16_hi {v(REC)}, {v(PDV+1)} offset:384
    ds_write_b16 {v(REC)}, {v(vZ)} offset:448""")
    e.label("K2_j4")
    for k in range(4):
        e(f"v_lshlrev_b32 {v(WX+2*k+1)}, 16, {v(WX+2*k)}")
        e(f"v_lshlrev_b32 {v(WX+2*k)}, 16, {v(WX+2*k)}")
    e("s_nop 0")

    def a_out(r, npairs):
        a = GA + 16 * r
        for k in range(npairs):
            e(f"v_pk_mul_f32 {v(a+2*k,2)}, {v(a+2*k,2)}, {s(sC,2)}")
        for k in range(npairs):
            e(f"v_cvt_pk_bf16_f32 {v(a+2*k)}, {v(a+2*k)}, {v(a+2*k+1)}")
        for k in range(npairs):
            row = 32 * r + 8 * (k // 2) + 2 * (k % 2)
            e(f"ds_write_b16 {v(aA)}, {v(a+2*k)} offset:{row*64}")
            e(f"ds_write_b16_d16_hi {v(aA)}, {v(a+2*k)} offset:{row*64+64}")

    a_out(0, 8)
    e(f"""s_cmp_ge_u32 {s(sW)}, 4
    s_cbranch_scc1 K2_j5""")
    a_out(1, 8)
    e("s_branch K2_nf3")
    e.label("K2_j5")
    e("s_mov_b32 exec_hi, 0")
    a_out(1, 1)
    e("s_mov_b64 exec, -1")
    e.label("K2_nf3")
    prof("agemm")
    e(f"""v_mov_b32 {v(t+4)}, 8
    s_waitcnt vmcnt(0)""")
    prof("recs")
    for k in range(12):
        e(f"s_mov_b64 exec, {s(masks[k],2)}")
        if k % 2 == 0:
            e("s_cbranch_execz K2_rk")
        e(f"""v_lshrrev_b32 {v(CA+k)}, 18, {v(R0+2*k+1)}
        ds_add_rtn_u32 {v(RK+k)}, {v(CA+k)}, {v(t+4)} offset:{CNT}""")
    e.label("K2_rk")
    e(f"""s_mov_b64 exec, -1
    v_lshlrev_b32 {v(t+5)}, 3, {v(vL)}
    s_waitcnt lgkmcnt(0)
    s_barrier""")
    prof("bar2")
    e(f"""ds_read_b64 {v(t+8,2)}, {v(t+5)} offset:{CNT}
    ds_read_b32 {v(t+12)}, {v(vZ)} offset:{FLAG}
    s_waitcnt lgkmcnt(0)
    v_add_u32 {v(t+9)}, {v(t+8)}, {v(t+9)}
    v_mov_b32 {v(t+13)}, {v(t+9)}
    v_readfirstlane_b32 {s(sMore)}, {v(t+12)}""")
    scan64(e, t + 13)
    e(f"""v_sub_u32 {v(t+10)}, {v(t+13)}, {v(t+9)}
    v_readlane_b32 {s(sEnd8)}, {v(t+13)}, 63
    v_add_u32 {v(t+10)}, {LIST}, {v(t+10)}
    v_add_u32 {v(t+11)}, {v(t+10)}, {v(t+8)}
    ds_write_b64 {v(t+5)}, {v(t+10,2)} offset:{BASE}
    s_mov_b32 {s(sFirst)}, 0
    s_cmp_le_u32 {s(sEnd8)}, {CAP*8}
    s_cbranch_scc1 K2_fits
    s_cmp_eq_u32 {s(sLim)}, 64
    s_cbranch_scc1 K2_fits
    s_movk_i32 {s(sLim)}, 64
    s_waitcnt lgkmcnt(0)
    s_barrier
    s_branch K2_round""")
    e.label("K2_fits")
    for k in range(12):
        e(f"s_mov_b64 exec, {s(masks[k],2)}")
        if k % 2 == 0:
            e("s_cbranch_execz K2_pl1")
        e(f"ds_read_b32 {v(CA+k)}, {v(CA+k)} offset:{BASE}")
    e.label("K2_pl1")
    e(f"""s_mov_b64 exec, -1
    v_add_u32 {v(t+5)}, {s(sEnd8)}, {v(t+5)}
    v_add_u32 {v(t+5)}, {LIST}, {v(t+5)}
    v_mov_b32 {v(t+8)}, 0
    v_mov_b32 {v(t+9)}, 0
    ds_write_b64 {v(t+5)}, {v(t+8,2)}
    s_waitcnt lgkmcnt(0)""")
    for k in range(12):
        e(f"s_mov_b64 exec, {s(masks[k],2)}")
        if k % 2 == 0:
            e("s_cbranch_execz K2_pl2")
        e(f"""v_add_u32 {v(CA+k)}, {v(CA+k)}, {v(RK+k)}
        ds_write_b64 {v(CA+k)}, {v(R0+2*k,2)}""")
    e.label("K2_pl2")
    e(f"""s_mov_b64 exec, -1
    s_add_u32 {s(sT0)}, {s(sEnd8)}, 255
    s_lshr_b32 {s(sT0)}, {s(sT0)}, 8
    s_lshr_b32 {s(sT1)}, {s(sT0)}, 3
    s_and_b32 {s(sT0)}, {s(sT0)}, 7
    s_mul_i32 {s(sP8)}, {s(sT1)}, {s(sW)}
    s_min_u32 {s(sT2)}, {s(sW)}, {s(sT0)}
    s_add_u32 {s(sP8)}, {s(sP8)}, {s(sT2)}
    s_cmp_lt_u32 {s(sW)}, {s(sT0)}
    s_addc_u32 {s(sT1)}, {s(sT1)}, {s(sP8)}
    s_lshl_b32 {s(sP8)}, {s(sP8)}, 8
    s_lshl_b32 {s(sT1)}, {s(sT1)}, 8
    s_min_u32 {s(sEnd8)}, {s(sEnd8)}, {s(sT1)}
    s_add_u32 {s(sT0)}, {s(sP8)}, {LIST}
    v_and_b32 {v(aLP)}, 31, {v(vL)}
    v_lshl_add_u32 {v(aLP)}, {v(aLP)}, 3, {s(sT0)}
    v_and_b32 {v(aLQ)}, 0x38, {v(vL)}
    v_add_u32 {v(aLQ)}, {s(sT0)}, {v(aLQ)}
    s_movk_i32 {s(sBN)}, -1000
    s_movk_i32 {s(sBC)}, -1000
    s_waitcnt lgkmcnt(0)
    s_barrier""")
    prof("bar3")
    e(f"""s_cmp_ge_u32 {s(sP8)}, {s(sEnd8)}
    s_cbranch_scc1 K2_notiles""")

    uid = [0]

    def S0():
        uid[0] += 1
        u = uid[0]
        e(f"ds_read_b64 {v(REC,2)}, {v(aLP)}")
        e(f"ds_read_u16 {v(G)}, {v(aLP)}")
        for j in range(4):
            e(f"ds_read_u16 {v(IDX+2*j)}, {v(aLQ)} offset:{64*j}")
        e(f"""s_sub_u32 {s(sT0)}, {s(sEnd8)}, {s(sP8)}
        s_lshr_b32 {s(sT0)}, {s(sT0)}, 3
        s_min_u32 {s(sT0)}, {s(sT0)}, 32
        s_sub_u32 {s(sT1)}, {s(sT0)}, 1
        s_waitcnt lgkmcnt(4)
        v_readlane_b32 {s(sT1)}, {v(REC)}, {s(sT1)}
        v_add_u32_sdwa {v(vP)}, {v(aPDc)}, {v(REC+1)} dst_sel:DWORD dst_unused:UNUSED_PAD src0_sel:DWORD src1_sel:WORD_1
        buffer_load_dwordx2 {v(PSV,2)}, {v(G,2)}, {s(rPSI,4)}, 0 idxen offen
        ds_read_b64 {v(PDV,2)}, {v(vP)}
        s_lshr_b32 {s(sT1)}, {s(sT1)}, 16
        s_sub_u32 {s(sT1)}, {s(sT1)}, 16
        s_cmp_lt_i32 {s(sT1)}, {s(sBN)}
        s_cbranch_scc1 K2_s0_{u}
        v_readfirstlane_b32 {s(sT2)}, {v(REC)}
        s_lshr_b32 {s(sBN)}, {s(sT2)}, 16
        v_subrev_u32 {v(aIB)}, {s(sBN)}, {v(aIBc)}
        s_cmp_lt_i32 {s(sT1)}, {s(sBN)}
        s_cbranch_scc1 K2_s0_{u}
        s_add_u32 {s(sT1)}, {s(sBN)}, 16
        s_lshl_b32 {s(sT1)}, {s(sT1)}, 16
        v_cmp_gt_u32 vcc, {s(sT1)}, {v(REC)}
        s_bfm_b64 {s(sM,2)}, {s(sT0)}, 0
        s_and_b32 {s(sM)}, {s(sM)}, vcc_lo
        s_bcnt1_i32_b32 {s(sT0)}, {s(sM)}""")
        e.label(f"K2_s0_{u}")
        e(f"""s_bfm_b64 {s(sM,2)}, {s(sT0)}, 0
        s_lshl_b32 {s(sT0)}, {s(sT0)}, 3
        s_mov_b32 {s(sM+1)}, {s(sM)}
        s_add_u32 {s(sP8)}, {s(sP8)}, {s(sT0)}
        v_add_u32_sdwa {v(aIM)}, {v(aIB)}, {v(REC)} dst_sel:DWORD dst_unused:UNUSED_PAD src0_sel:DWORD src1_sel:WORD_1
        v_add_u32 {v(aLP)}, {s(sT0)}, {v(aLP)}
        v_add_u32 {v(aLQ)}, {s(sT0)}, {v(aLQ)}""")

    def DMA(half):
        for j in range(4):
            e(f"s_add_u32 m0, {s(sSTG)}, {1024*j}")
            e("s_nop 0")
            e(f"buffer_load_dwordx4 {v(IDX+2*j,2)}, {s(rBT,4)}, {s(s128) if half else 0} idxen offen lds")

    def RD():
        for k in range(4):
            e(f"ds_read_b128 {v(BR+4*k,4)}, {v(aBR+k)}")

    def AOP(tt):
        for u in range(2):
            e(f"ds_read_b64_tr_b16 {v(AO+2*u,2)}, {v(aAO)} offset:{tt*PLANE + 256*u}")

    def S1():
        e(f"""v_sub_f32 {v(PDV)}, {v(PDV)}, {v(PSV)}
        v_sub_f32 {v(PDV+1)}, {v(PDV+1)}, {v(PSV+1)}
        v_cvt_pk_bf16_f32 {v(vD)}, {v(PDV)}, {v(PDV+1)}
        v_dot2_f32_bf16 {v(vP)}, {v(vD)}, {v(vD)}, 0
        s_mov_b64 exec, {s(sM,2)}
        ds_write_b16 {v(aIM)}, {v(vD)}
        ds_write_b16_d16_hi {v(aIM)}, {v(vD)} offset:16
        v_cvt_pk_bf16_f32 {v(REC)}, {v(vP)}, {v(vP)}
        ds_write_b64 {v(aXT)}, {v(REC,2)} offset:64
        s_mov_b32 exec_hi, 0
        ds_write_b16 {v(aIM)}, {v(vONE)}
        s_mov_b64 exec, -1""")

    def rebase_ao():
        e(f"v_mad_u32_u24 {v(aAO)}, {v(vH32)}, {s(sBN)}, {v(aAOc)}")

    def S3():
        for k in range(4):
            e(f"ds_read_b64_tr_b16 {v(S4+2*k,2)}, {v(aS4)} offset:{80*8*k}")
        e(f"""s_mov_b64 exec, {s(sM,2)}
        ds_write_b16 {v(aIM)}, {v(vZ)}
        ds_write_b16 {v(aIM)}, {v(vZ)} offset:16
        s_mov_b64 exec, -1""")

    def xm(k, tt):
        if k < 2:
            b = BR + 8 * (tt & 1) + 4 * k
            e(f"{MFMA} {v(X,16)}, {v(b,4)}, {v(ID+4*k,4)}, {v(X,16) if k else 0}")
        else:
            e(f"{MFMA} {v(X,16)}, {v(SO,4)}, {v(AO,4)}, {v(X,16)}")

    OLD, aF0, aF1, aF2 = MP, MP + 2, MP + 3, MP + 4

    def flush_pre(base):
        e(f"""s_mul_i32 {s(sT0)}, {s(base)}, 136
        s_mul_i32 {s(sT1)}, {s(sW)}, 272
        s_add_u32 {s(sT1)}, {s(sT1)}, {NB*272}
        s_cmp_eq_u32 {s(base)}, {s(sFN)}
        s_cselect_b32 {s(sT1)}, {s(sT1)}, {s(sT0)}
        v_add_u32 {v(aF0)}, {s(sT1)}, {v(aFMc)}
        v_add_u32 {v(aF1)}, {s(sT0)}, {v(aFMc)}
        s_mul_i32 {s(sT0)}, {s(base)}, 24
        ds_read_b64 {v(OLD,2)}, {v(aF0)}
        v_add_u32 {v(aF2)}, {s(sT0)}, {v(aFPc)}""")

    def flush(base):
        A = lambda tt, r: ACC + 16 * tt + r
        for tt in range(4):
            for k in range(6):
                if tt == 0:
                    e(f"v_pk_mul_f32 {v(A(0,4+2*k),2)}, {v(A(0,4+2*k),2)}, {v(WX,2)}")
                else:
                    e(f"v_pk_fma_f32 {v(A(0,4+2*k),2)}, {v(A(tt,4+2*k),2)}, {v(WX+2*tt,2)}, {v(A(0,4+2*k),2)}")
        e(f"""s_waitcnt lgkmcnt(0)
        s_mov_b32 exec_hi, 0""")
        for tt in range(4):
            e(f"v_dot2_f32_bf16 {v(A(tt,0))}, {v(OLD+tt//2)}, {s((sK0,sK1)[tt&1])}, {v(A(tt,0))}")
        e("s_mov_b32 exec_hi, -1")
        Q = lambda c, i: A(1, 4 * c + i)
        for c in range(1, 4):
            for i in range(2):
                e(f"v_add_f32_dpp {v(Q(c,i))}, {v(A(0,4*c+i))}, {v(A(0,4*c+i))} row_ror:8 row_mask:0xf bank_mask:0x3")
        for c in range(1, 4):
            for i in range(2):
                e(f"v_add_f32_dpp {v(Q(c,i))}, {v(A(0,4*c+2+i))}, {v(A(0,4*c+2+i))} row_ror:8 row_mask:0xf bank_mask:0xc")
        P = lambda i: A(2, 4 + 2 * i)
        for i in range(4):
            for tp in range(2):
                e(f"v_cvt_pk_bf16_f32 {v(P(i)+tp)}, {v(A(2*tp,i))}, {v(A(2*tp+1,i))}")
        for c in range(1, 4):
            e(f"v_add_f32_dpp {v(Q(c,2))}, {v(Q(c,0))}, {v(Q(c,0))} row_half_mirror row_mask:0xf bank_mask:0x5")
        for c in range(1, 4):
            e(f"v_add_f32_dpp {v(Q(c,2))}, {v(Q(c,1))}, {v(Q(c,1))} row_half_mirror row_mask:0xf bank_mask:0xa")
        for c in range(1, 4):
            e(f"v_cvt_f64_f32 {v(Q(c,0),2)}, {v(Q(c,2))}")
        for c in range(1, 4):
            e(f"ds_add_f64 {v(aF2)}, {v(Q(c,0),2)} offset:{16*(c-1)}")
        e(f"""s_sub_u32 {s(sT0)}, {s(sLN)}, {s(base)}
        s_mov_b32 exec_hi, 0
        ds_write_b64 {v(aF0)}, {v(P(0),2)}""")
        for i in range(4):
            if i:
                e(f"s_cmp_ge_u32 {s(sT0)}, {2*i}")
                e("s_cselect_b32 exec_lo, -1, 0")
            else:
                e("s_mov_b32 exec_lo, 0")
            e(f"""s_cmp_ge_u32 {s(sT0)}, {8+2*i}
            s_cselect_b32 exec_hi, -1, 0
            ds_write_b64 {v(aF1)}, {v(P(i),2)} offset:{272*i}""")
        e("s_mov_b64 exec, -1")

    def wh_loads():
        e(f"""s_and_b32 {s(sT0)}, {s(sW)}, 3
        s_lshl_b32 {s(sT0)}, {s(sT0)}, 11
        v_lshlrev_b32 {v(IDX)}, 4, {v(vL)}
        v_add_u32 {v(IDX+2)}, 65536, {v(IDX)}
        v_add_u32 {v(IDX+4)}, {65536+4096}, {v(IDX)}
        v_add_u32 {v(IDX)}, 32768, {v(IDX)}
        v_xor_b32 {v(IDX)}, {s(sT0)}, {v(IDX)}""")
        for k in range(4):
            if k:
                e(f"v_xor_b32 {v(IDX+6)}, {2048*k}, {v(IDX)}")
            a = IDX + 6 if k else IDX
            e(f"global_load_dwordx4 {v(WH1+8*k,4)}, {v(a)}, {s(sWF,2)}")
            e(f"global_load_dwordx4 {v(WH1+8*k+4,4)}, {v(a)}, {s(sWF,2)} offset:1024")
        for k in range(8):
            e(f"global_load_dwordx4 {v(WH2+4*k,4)}, {v(IDX+2+2*(k//4))}, {s(sWF,2)} offset:{1024*(k%4)}")

    def unit(tt, nxt, tag):
        e(f"v_exp_f32 {v(T)}, {v(X)}")
        e("s_setprio 1")
        for i in range(1, 8):
            e(f"v_exp_f32 {v(T+i)}, {v(X+i)}")
        e("s_setprio 2")
        for i in range(8, 16):
            e(f"v_exp_f32 {v(T+i)}, {v(X+i)}")
        if tt == 0:
            e(f"""s_cmp_eq_u32 {s(sBP)}, {s(sBC)}
            s_cbranch_scc1 K2_nofl_{tag}
            s_cmp_lt_i32 {s(sBP)}, 0
            s_cbranch_scc1 K2_nofl_{tag}""")
            flush(sBP)
            e.label(f"K2_nofl_{tag}")
        for i in range(8):
            e(f"v_pk_fma_f32 {v(T+2*i,2)}, {v(T+2*i,2)}, {s(sC,2)}, {s(sC,2)}")
        for i in range(16):
            e(f"v_rcp_f32 {v(T+i)}, {v(T+i)}")
        for i in range(8):
            e(f"v_pk_mul_f32 {v(T+2*i,2)}, {v(T+2*i,2)}, {v(X+2*i,2)}")
        dox = tt < 3 or nxt
        e("s_waitcnt lgkmcnt(0)")
        if dox:
            xm(0, tt + 1)
        for i in range(8):
            e(f"v_cvt_pk_bf16_f32 {v(MP+i)}, {v(T+2*i)}, {v(T+2*i+1)}")
        e("s_setprio 3")
        if dox:
            xm(1, tt + 1)
            xm(2, tt + 1)
        a = ACC + 16 * tt
        e(f"""s_cmp_eq_u32 {s(sBP)}, {s(sBC)}
        s_cbranch_scc1 K2_acc_{tag}{tt}
        {MFMA} {v(a,16)}, {v(S4,4)}, {v(MP,4)}, 0
        s_branch K2_acd_{tag}{tt}""")
        e.label(f"K2_acc_{tag}{tt}")
        e(f"{MFMA} {v(a,16)}, {v(S4,4)}, {v(MP,4)}, {v(a,16)}")
        e.label(f"K2_acd_{tag}{tt}")
        e(f"{MFMA} {v(a,16)}, {v(S4+4,4)}, {v(MP+4,4)}, {v(a,16)}")

    def rotate_and_s0(pre):
        e(f"""s_mov_b32 {s(sBP)}, {s(sBC)}
        s_mov_b32 {s(sBC)}, {s(sBN)}""")
        if pre:
            e(f"""s_cmp_eq_u32 {s(sBP)}, {s(sBC)}
            s_cbranch_scc1 K2_nopre""")
            flush_pre(sBP)
            e.label("K2_nopre")
        e(f"""s_cmp_ge_u32 {s(sP8)}, {s(sEnd8)}
        s_cbranch_scc1 K2_last""")
        S0()

    e("s_setprio 3")
    e(f"""s_add_u32 {s(sT0)}, {s(sEnd8)}, {LIST - 6}
    v_mov_b32 {v(vD)}, {s(sT0)}
    ds_read_u16 {v(vD)}, {v(vD)}""")
    S0()
    e("s_waitcnt lgkmcnt(0)")
    DMA(0)
    e(f"""v_readfirstlane_b32 {s(sLN)}, {v(vD)}
    s_mov_b32 {s(sFN)}, {s(sBN)}
    s_cmp_lg_u32 {s(sLN)}, {s(sFN)}
    s_cbranch_scc1 K2_nohub
    ds_write_b32 {v(vZ)}, {v(vONE)} offset:{FLAG+4}""")
    e.label("K2_nohub")
    rebase_ao()
    AOP(0)
    e("s_waitcnt vmcnt(4)")
    S1()
    e(f"ds_read_b128 {v(SO,4)}, {v(aSO)}")
    e("s_waitcnt vmcnt(0)")
    RD()
    e("s_waitcnt lgkmcnt(0)")
    DMA(1)
    xm(0, 0); xm(1, 0); xm(2, 0)
    AOP(1)
    S3()
    prof("fill")
    rotate_and_s0(False)
    e(".p2align 6")
    e.label("K2_loop")
    e("s_setprio 0")
    unit(0, True, "a")
    e("s_waitcnt vmcnt(1)")
    RD()
    AOP(2)
    e("s_waitcnt lgkmcnt(2)")
    DMA(0)
    e("s_setprio 0")
    unit(1, True, "a")
    AOP(3)
    e("s_waitcnt vmcnt(4)")
    S1()
    e("s_setprio 0")
    unit(2, True, "a")
    e("s_waitcnt vmcnt(0)")
    RD()
    rebase_ao()
    AOP(0)
    e(f"ds_read_b128 {v(SO,4)}, {v(aSO)}")
    e("s_waitcnt lgkmcnt(3)")
    DMA(1)
    e("s_setprio 0")
    unit(3, True, "a")
    AOP(1)
    S3()
    rotate_and_s0(True)
    e("s_branch K2_loop")
    e.label("K2_last")
    prof("last")
    e("s_setprio 0")
    unit(0, False, "b")
    e("s_waitcnt vmcnt(0)")
    RD()
    AOP(2)
    wh_loads()
    e("s_setprio 0")
    unit(1, False, "b")
    AOP(3)
    e("s_nop 4")
    e("s_setprio 0")
    unit(2, False, "b")
    e("s_nop 6")
    e("s_setprio 0")
    unit(3, False, "b")
    flush_pre(sBC)
    e("s_setprio 0")
    flush(sBC)
    e("s_branch K2_post")
    e.label("K2_notiles")
    e(f"s_movk_i32 {s(sFN)}, -1")
    wh_loads()
    e.label("K2_post")
    prof("main")
    YA, YB, RA, RB = ACC, ACC + 16, ACC + 32, ACC + 48
    aH = IDX
    h_addr(aH, IDX + 2, True)
    h_frags(aH, IDX + 2)
    aM = IDX + 4
    e(f"""v_and_b32 {v(aM)}, 31, {v(vL)}
    v_mul_u32_u24 {v(aM)}, 272, {v(aM)}
    v_lshl_add_u32 {v(aM)}, {v(G+1)}, 1, {v(aM)}
    s_lshr_b32 {s(sT0)}, {s(sW)}, 2
    s_mul_i32 {s(sT0)}, {s(sT0)}, {64*272}
    s_add_u32 {s(sT0)}, {s(sT0)}, {MT}
    v_add_u32 {v(aM)}, {s(sT0)}, {v(aM)}
    s_waitcnt vmcnt(0) lgkmcnt(0)
    s_cmp_ge_u32 {s(sW)}, 4
    s_cbranch_scc1 K2_e1""")

    def gemm(W, first, small):
        for k in range(8):
            if not first:
                e(f"s_waitcnt lgkmcnt({14-2*k})")
            e(f"{MFMA} {v(YA,16)}, {v(W+4*k,4)}, {v(HF0+4*k,4)}, {v(YA,16) if (k or not first) else 0}")
            if small:
                e(f"{MFMA} {v(YB,16)}, {v(HF1+4*k,4)}, {v(W+4*k,4)}, {v(YB,16) if (k or not first) else 0}")
            else:
                e(f"{MFMA} {v(YB,16)}, {v(W+4*k,4)}, {v(HF1+4*k,4)}, {v(YB,16) if (k or not first) else 0}")
        if first:
            for k in range(2):
                e(f"{MFMA} {v(RA,16)}, {v(ID+4*k,4)}, {v(HF0+4*k,4)}, {v(RA,16) if k else 0}")
                if small:
                    e(f"{MFMA} {v(RB,16)}, {v(HF1+4*k,4)}, {v(ID+4*k,4)}, {v(RB,16) if k else 0}")
                else:
                    e(f"{MFMA} {v(RB,16)}, {v(ID+4*k,4)}, {v(HF1+4*k,4)}, {v(RB,16) if k else 0}")

    gemm(WH1, True, False)
    e("s_branch K2_e2")
    e.label("K2_e1")
    gemm(WH1, True, True)
    e.label("K2_e2")
    e("s_barrier")
    prof("bar4")
    e(f"""s_cmp_lt_i32 {s(sFN)}, 0
    s_cbranch_scc1 K2_fx2
    s_mul_i32 {s(sT0)}, {s(sFN)}, 136
    s_add_u32 {s(sT0)}, {s(sT0)}, {MT}
    s_mul_i32 {s(sT1)}, {s(sW)}, 272
    s_add_u32 {s(sT1)}, {s(sT1)}, {MT + NB*272}
    v_lshl_add_u32 {v(MP)}, {v(vL)}, 2, {s(sT0)}
    v_lshl_add_u32 {v(MP+1)}, {v(vL)}, 2, {s(sT1)}
    ds_read_b32 {v(MP+4)}, {v(vZ)} offset:{FLAG+4}
    ds_read_b32 {v(MP+2)}, {v(MP)}
    ds_read_b32 {v(MP+3)}, {v(MP+1)}
    s_waitcnt lgkmcnt(0)
    v_readfirstlane_b32 {s(sT0)}, {v(MP+4)}
    v_lshlrev_b32 {v(MP+5)}, 16, {v(MP+2)}
    v_and_b32 {v(MP+6)}, 0xffff0000, {v(MP+2)}
    s_cmp_eq_u32 {s(sT0)}, 0
    s_cbranch_scc1 K2_fx1
    ds_pk_add_bf16 {v(MP)}, {v(MP+3)}
    s_branch K2_fx2""")
    e.label("K2_fx1")
    e(f"""v_dot2_f32_bf16 {v(MP+5)}, {v(MP+3)}, {s(sK0)}, {v(MP+5)}
    v_dot2_f32_bf16 {v(MP+6)}, {v(MP+3)}, {s(sK1)}, {v(MP+6)}
    s_nop 2
    v_cvt_pk_bf16_f32 {v(MP+5)}, {v(MP+5)}, {v(MP+6)}
    ds_write_b32 {v(MP)}, {v(MP+5)}""")
    e.label("K2_fx2")
    e("""s_waitcnt lgkmcnt(0)
    s_barrier""")
    e(f"""s_cmp_eq_u32 {s(sMore)}, 0
    s_cbranch_scc1 K2_e3
    s_add_u32 {s(sOff)}, {s(sOff)}, {s(sLim)}
    s_nop 7
    s_branch K2_round""")
    e.label("K2_e3")
    for k in range(8):
        e(f"ds_read_b128 {v(HF0+4*k,4)}, {v(aM)} offset:{32*k}")
        e(f"ds_read_b128 {v(HF1+4*k,4)}, {v(aM)} offset:{32*k + 32*272}")
    rOUT = rH
    e(f"s_mov_b32 {s(sM)}, 1.0")
    e(f"s_mov_b32 {s(sM+1)}, 1.0")
    srd(e, rOUT, s(pOUT), s(pOUT + 1), N * 256)
    aRD, aST = IDX + 2, IDX + 6
    e(f"""v_lshrrev_b32 {v(aST)}, 2, {v(vL)}
    v_and_b32 {v(vD)}, 3, {v(vL)}
    v_lshlrev_b32 {v(vD)}, 4, {v(vD)}
    s_mul_i32 {s(sT1)}, {s(sW)}, 2560
    s_add_u32 {s(sT1)}, {s(sT1)}, {IMG}
    v_mul_u32_u24 {v(aRD)}, 80, {v(aST)}
    v_add3_u32 {v(aRD)}, {v(aRD)}, {v(vD)}, {s(sT1)}
    s_lshr_b32 {s(sT0)}, {s(sW)}, 2
    s_lshl_b32 {s(sT0)}, {s(sT0)}, 6
    s_add_u32 {s(sT0)}, {s(sT0)}, {s(sNB)}
    s_lshl_b32 {s(sT0)}, {s(sT0)}, 8
    s_and_b32 {s(sT1)}, {s(sW)}, 3
    s_lshl_b32 {s(sT1)}, {s(sT1)}, 6
    s_add_u32 {s(sT2)}, {s(sT0)}, {s(sT1)}
    v_lshl_add_u32 {v(aST)}, {v(aST)}, 8, {v(vD)}
    v_add_u32 {v(aST)}, {s(sT2)}, {v(aST)}
    s_cmp_ge_u32 {s(sW)}, 4
    s_cbranch_scc1 K2_e4""")

    def silu_out(Y, R, n):
        for i in range(n // 2):
            e(f"v_pk_mul_f32 {v(T+2*i,2)}, {v(Y+2*i,2)}, {s(sC,2)}")
        for i in range(n):
            e(f"v_exp_f32 {v(T+i)}, {v(T+i)}")
        if n == 2:
            e("s_nop 0")
        for i in range(n // 2):
            e(f"v_pk_add_f32 {v(T+2*i,2)}, {v(T+2*i,2)}, {s(sM,2)}")
        for i in range(n):
            e(f"v_rcp_f32 {v(T+i)}, {v(T+i)}")
        if n == 2:
            e("s_nop 0")
        for i in range(n // 2):
            e(f"v_pk_fma_f32 {v(T+2*i,2)}, {v(T+2*i,2)}, {v(Y+2*i,2)}, {v(R+2*i,2)}")
        for i in range(n // 2):
            e(f"v_cvt_pk_bf16_f32 {v(X+i)}, {v(T+2*i)}, {v(T+2*i+1)}")

    def out_tile(Y, R, rowoff, d):
        silu_out(Y, R, 16)
        for j in range(4):
            e(f"ds_write_b64 {v(aXT)}, {v(X+2*j,2)} offset:{16*j}")
        e(f"ds_read_b128 {v(d,4)}, {v(aRD)}")
        e(f"ds_read_b128 {v(d+4,4)}, {v(aRD)} offset:{16*80}")
        e(f"v_add_u32 {v(vD)}, {rowoff*256}, {v(aST)}")
        e(f"v_add_u32 {v(vP)}, {rowoff*256+4096}, {v(aST)}")
        e("s_waitcnt lgkmcnt(1)")
        e(f"buffer_store_dwordx4 {v(d,4)}, {v(vD)}, {s(rOUT,4)}, 0 offen")
        e("s_waitcnt lgkmcnt(0)")
        e(f"buffer_store_dwordx4 {v(d+4,4)}, {v(vP)}, {s(rOUT,4)}, 0 offen")

    gemm(WH2, False, False)
    e("s_nop 10")
    out_tile(YA, RA, 0, BR)
    out_tile(YB, RB, 32, BR + 8)
    e("s_branch K2_e5")
    e.label("K2_e4")
    gemm(WH2, False, True)
    e("s_nop 10")
    out_tile(YA, RA, 0, BR)
    silu_out(YB, RB, 2)
    e(f"""v_lshl_add_u32 {v(vD)}, {v(vL)}, 1, {s(sT2)}
    v_add_u32 {v(vD)}, {32*256}, {v(vD)}
    s_mov_b32 exec_hi, 0
    buffer_store_short {v(X)}, {v(vD)}, {s(rOUT,4)}, 0 offen
    buffer_store_short_d16_hi {v(X)}, {v(vD)}, {s(rOUT,4)}, 0 offen offset:256
    s_mov_b64 exec, -1""")
    e.label("K2_e5")
    e(f"""s_sub_u32 {s(sT0)}, {N}, {s(sNB)}
    s_min_u32 {s(sT0)}, {s(sT0)}, {NB}
    s_mul_i32 {s(sT0)}, {s(sT0)}, 3
    v_lshl_add_u32 {v(T)}, {s(sW)}, 6, {v(vL)}
    v_subrev_u32 {v(T)}, {512 - 3*NB}, {v(T)}
    v_cmp_gt_u32 vcc, {s(sT0)}, {v(T)}
    s_and_b64 exec, exec, vcc
    s_cbranch_execz K2_fin
    v_mul_u32_u24 {v(T+1)}, 0x5556, {v(T)}
    v_lshrrev_b32 {v(T+1)}, 16, {v(T+1)}
    v_add_u32 {v(T+1)}, {v(T+1)}, {v(T)}
    v_lshlrev_b32 {v(T+1)}, 2, {v(T+1)}
    v_add_u32 {v(T+2)}, {PD}, {v(T+1)}
    v_lshlrev_b32 {v(T+1)}, 4, {v(T)}
    v_add_u32 {v(T+1)}, {PACC}, {v(T+1)}
    ds_read_b32 {v(T+2)}, {v(T+2)} offset:4
    ds_read_b128 {v(T+4,4)}, {v(T+1)}
    s_mul_i32 {s(sT0)}, {s(sNB)}, 6
    s_add_u32 {s(sT0)}, {s(sT0)}, {N*256}
    v_lshl_add_u32 {v(T)}, {v(T)}, 1, {s(sT0)}
    s_waitcnt lgkmcnt(0)
    v_add_f64 {v(T+4,2)}, {v(T+4,2)}, {v(T+6,2)}
    v_cvt_f32_f64 {v(T+1)}, {v(T+4,2)}
    v_add_f32 {v(T+1)}, {v(T+1)}, {v(T+2)}
    v_cvt_pk_bf16_f32 {v(T+1)}, {v(T+1)}, {v(T+1)}
    global_store_short {v(T)}, {v(T+1)}, {s(pOUT,2)}""")
    e.label("K2_fin")
    if OPT["prof"]:
        e("s_mov_b64 exec, -1")
        prof("stores")
        e("s_waitcnt vmcnt(0)")
        prof("drained")
        prof.store(pWS, sW, 1, T + 4)
    if OPT["spin"]:
        prof.spin(pWS, sW, T + 8, True)
    e.label("K2_end")
    e("s_endpgm")
    return e, lds, nvgpr, prof.names


HEADER = """; EGNN layer (N=25000 nodes, E=400000 edges, D=128), bf16 in / bf16 out.  Generated by gen/gen.py.
"""


def kd(name, nv):
    return f""".amdhsa_kernel {name}
  .amdhsa_next_free_vgpr {nv}
  .amdhsa_next_free_sgpr 102
  .amdhsa_accum_offset {(nv + 3) // 4 * 4}
  .amdhsa_group_segment_fixed_size 0
  .amdhsa_kernarg_size 88
  .amdhsa_user_sgpr_count 2
  .amdhsa_user_sgpr_kernarg_segment_ptr 1
  .amdhsa_system_sgpr_workgroup_id_x 1
.end_amdhsa_kernel
"""


def main():
    a, lds1, nv1, pn1 = k1()
    b, lds2, nv2, pn2 = k2()
    for name, x in (("k1", a), ("k2", b)):
        for p in check_hazards(x.lines):
            print("HAZARD", name, p, file=sys.stderr)
    out = HEADER
    out += f"; @launch kernel=egnn_prep_kernel grid=({NWG},1,1) block=(512,1,1) lds={lds1}\n"
    out += f"; @launch kernel=egnn_main_kernel grid=({NWG},1,1) block=(512,1,1) lds={lds2}\n"
    if OPT["prof"]:
        out += f"; prof0 {' '.join(pn1)}\n"
    out += '.amdgcn_target "amdgcn-amd-amdhsa--gfx950"\n.text\n'
    for name, x in (("egnn_prep_kernel", a), ("egnn_main_kernel", b)):
        out += f".globl {name}\n.p2align 8\n.type {name},@function\n" + x.text()
    out += '.section .rodata,"a"\n.p2align 6\n' + kd("egnn_prep_kernel", nv1) + ".p2align 6\n" + kd("egnn_main_kernel", nv2)
    open(sys.argv[1], "w").write(out)
    print(f"lds {lds1} {lds2}  vgpr {nv1} {nv2}", file=sys.stderr)


main()
```

```python
import sys, struct
from asmlib import Asm, Alloc, v, s, check_hazards

N, E, NB, CH, NWG = 25000, 400000, 98, 1568, 256
WS_BT, WS_REC, WS_TAB, WS_PS, WS_WF, WS_PROF = 0, 0x640000, 0x980000, 0xA00000, 0xA80000, 0x1000000
NEG_LOG2E = struct.unpack("<I", struct.pack("<f", -1.4426950408889634))[0]
MFMA = "v_mfma_f32_32x32x16_bf16"

OPT = dict(prof=0, spin="", neg=0, wg0=0)
for a in sys.argv[2:]:
    k, x = a.split("=")
    OPT[k] = x if k == "spin" else int(x, 0)


def srd(e, d, lo, hi, nrec, stride=0):
    e(f"s_mov_b32 {s(d)}, {lo}")
    if stride:
        e(f"s_or_b32 {s(d+1)}, {hi}, {hex(stride << 16)}")
    else:
        e(f"s_mov_b32 {s(d+1)}, {hi}")
    e(f"s_mov_b32 {s(d+2)}, {nrec}")
    e(f"s_mov_b32 {s(d+3)}, 0x20000")


def addptr(e, d, base, off):
    e(f"s_add_u32 {s(d)}, {s(base)}, {hex(off)}")
    e(f"s_addc_u32 {s(d+1)}, {s(base+1)}, 0")


def scan64(e, r):
    for m in ("row_shr:1 row_mask:0xf", "row_shr:2 row_mask:0xf", "row_shr:4 row_mask:0xf", "row_shr:8 row_mask:0xf",
              "row_bcast:15 row_mask:0xa", "row_bcast:31 row_mask:0xc"):
        e("s_nop 1")
        e(f"v_add_u32_dpp {v(r)}, {v(r)}, {v(r)} {m} bank_mask:0xf")


class Prof:
    def __init__(self, e, sbase, n, tag):
        self.e, self.sb, self.n, self.names, self.tag = e, sbase, n, [], tag

    def spin(self, ws, sW, tmp, last):
        e, sb = self.e, self.sb
        e(f"""s_mov_b64 exec, -1
        s_waitcnt vmcnt(0)""")
        self("drained")
        mine = OPT["spin"].startswith(self.tag)
        e(f"""s_load_dwordx2 {s(sb+6,2)}, s[0:1], 72
        v_mov_b32 {v(tmp)}, 0
        s_waitcnt lgkmcnt(0)""")
        if mine:
            if OPT["neg"]:
                e(f"s_not_b32 {s(sb+4)}, {s(sb+4)}")
            e(f"""v_mov_b32 {v(tmp+2)}, {s(sb+4)}
            s_mov_b64 exec, 1""")
            if OPT["wg0"]:
                e(f"""s_or_b32 s3, {s(sW)}, s2
                s_cmp_lg_u32 s3, 0
                s_cbranch_scc1 K{self.tag}spin_end""")
            e(f"global_atomic_umax {v(tmp)}, {v(tmp+2)}, {s(sb+6,2)} sc1")
            e("s_waitcnt vmcnt(0)")
        if last:
            e(f"""s_or_b32 s3, {s(sW)}, s2
            s_cmp_lg_u32 s3, 0
            s_cbranch_scc1 K{self.tag}spin_end
            s_mov_b32 {s(sb+5)}, 0""")
            e.label("spin_loop")
            e(f"""global_load_dword {v(tmp+2)}, {v(tmp)}, {s(sb+6,2)} offset:{0 if mine else -512} sc1
            s_waitcnt vmcnt(0)
            v_readfirstlane_b32 {s(sb+4)}, {v(tmp+2)}
            s_memrealtime {s(sb+2,2)}
            s_add_u32 {s(sb+5)}, {s(sb+5)}, 1
            s_cmp_gt_u32 {s(sb+5)}, 20000
            s_cbranch_scc1 K{self.tag}spin_end""")
            if OPT["neg"]:
                e(f"s_not_b32 {s(sb+4)}, {s(sb+4)}")
            e(f"""s_add_u32 {s(sb+4)}, {s(sb+4)}, 5500
            s_waitcnt lgkmcnt(0)
            s_sub_u32 {s(sb+2)}, {s(sb+2)}, {s(sb+4)}
            s_cmp_lt_i32 {s(sb+2)}, 0
            s_cbranch_scc1 spin_loop
            s_add_u32 {s(sb+4)}, {s(sb+4)}, 500""")
            e.label("spin_loop2")
            e(f"""s_memrealtime {s(sb+2,2)}
            s_add_u32 {s(sb+5)}, {s(sb+5)}, 1
            s_cmp_gt_u32 {s(sb+5)}, 40000
            s_cbranch_scc1 K{self.tag}spin_end
            s_waitcnt lgkmcnt(0)
            s_sub_u32 {s(sb+2)}, {s(sb+2)}, {s(sb+4)}
            s_cmp_lt_i32 {s(sb+2)}, 0
            s_cbranch_scc1 spin_loop2""")
        e.label(f"K{self.tag}spin_end")

    def __call__(self, name):
        if OPT["spin"]:
            if self.tag + name == OPT["spin"]:
                self.e(f"s_memrealtime {s(self.sb, 2)}")
                self.e("s_waitcnt lgkmcnt(0)")
                self.e(f"s_mov_b32 {s(self.sb + 4)}, {s(self.sb)}")
            return
        if not OPT["prof"]:
            return
        i = len(self.names)
        assert i < self.n
        self.names.append(name)
        if i == 0:
            self.e(f"s_memrealtime {s(self.sb + self.n + 2, 2)}")
        self.e(f"s_memtime {s(self.sb + self.n, 2)}")
        self.e("s_waitcnt lgkmcnt(0)")
        self.e(f"s_mov_b32 {s(self.sb + i)}, {s(self.sb + self.n)}")

    def store(self, ws, sW, region, tmp):
        if not OPT["prof"]:
            return
        e = self.e
        e(f"s_memrealtime {s(self.sb + self.n, 2)}")
        e(f"s_lshl_b32 s3, s2, 3")
        e(f"s_add_u32 s3, s3, {s(sW)}")
        e(f"s_lshl_b32 s3, s3, 7")
        e(f"s_add_u32 s3, s3, {hex(WS_PROF + region * 0x100000)}")
        e("s_waitcnt lgkmcnt(0)")
        e(f"v_mov_b32 {v(tmp)}, s3")
        for i in range(len(self.names)):
            e(f"v_mov_b32 {v(tmp+1)}, {s(self.sb+i)}")
            e(f"global_store_dword {v(tmp)}, {v(tmp+1)}, {s(ws,2)} offset:{4*i}")
        e(f"v_mov_b32 {v(tmp+1)}, {s(self.sb+self.n)}")
        e(f"global_store_dword {v(tmp)}, {v(tmp+1)}, {s(ws,2)} offset:124")
        e(f"v_mov_b32 {v(tmp+1)}, {s(self.sb+self.n+2)}")
        e(f"global_store_dword {v(tmp)}, {v(tmp+1)}, {s(ws,2)} offset:120")


def k1():
    e = Asm()
    L = Alloc(0, 160 * 1024)
    CNT = L(1024, 16)
    BASE = L(1024, 16)
    RECS = L(CH * 8, 16)
    HT = L(25600, 256)
    W2 = L(32768, 256)
    OUT = L(128 * 272, 16)
    lds = L.p
    pH, pPOS, pEA, pSRC, pDST, pWE, pWX, pWH, pWS = 4, 6, 8, 10, 12, 14, 16, 18, 20
    rH, rWE = 24, 28
    sW, sE0, sLim, sNB, sT0, sT1, sC = 32, 33, 34, 35, 36, 37, 38
    sEM, sC2, sP = 40, 42, 44
    prof = Prof(e, 60, 16, "1")
    vL, vDST, vSRC, vEA, vCA, vRK, vREC = 1, 4, 8, 12, 16, 20, 24
    t = 32
    vWF, vHF, vACC = 64, 96, 160

    e.label("egnn_prep_kernel")
    e(f"""s_cmp_ge_u32 s2, {NWG}
    s_cbranch_scc1 K1_end""")
    if OPT["spin"]:
        prof("entry")
    e(f"""s_load_dwordx16 s[4:19], s[0:1], 0
    s_load_dwordx2 s[20:21], s[0:1], 80""")
    prof("start")
    e(f"""v_lshrrev_b32 v2, 6, v0
    v_and_b32 {v(vL)}, 63, v0
    v_readfirstlane_b32 {s(sW)}, v2
    s_mul_i32 {s(sE0)}, s2, {CH}
    s_sub_u32 {s(sLim)}, {E}, {s(sE0)}
    s_lshr_b32 {s(sLim)}, {s(sLim)}, 2
    s_min_u32 {s(sLim)}, {s(sLim)}, {CH // 4}
    s_lshl_b32 {s(sT0)}, {s(sE0)}, 1
    v_lshl_add_u32 v3, v0, 3, {s(sT0)}
    v_lshlrev_b32 v2, 1, v3
    s_mul_i32 {s(sNB)}, s2, {NB}
    v_cmp_gt_u32 vcc, {s(sLim)}, v0
    s_and_b64 {s(sEM,2)}, vcc, exec
    s_mov_b64 exec, {s(sEM,2)}
    s_waitcnt lgkmcnt(0)
    s_cbranch_execz K1_noedge
    global_load_dwordx4 {v(vDST,4)}, v2, {s(pDST,2)}
    global_load_dwordx4 {v(vSRC,4)}, v2, {s(pSRC,2)}
    global_load_dwordx2 {v(vEA,2)}, v3, {s(pEA,2)}""")
    e.label("K1_noedge")
    prof("eld")
    e("s_mov_b64 exec, -1")
    srd(e, rH, s(pH), s(pH + 1), N * 256)
    srd(e, rWE, s(pWE), s(pWE + 1), 258 * 256)
    e(f"""v_lshrrev_b32 {v(t)}, 4, v0
    v_xor_b32 {v(t+1)}, {v(t)}, v0
    v_and_b32 {v(t+1)}, 15, {v(t+1)}
    v_add_u32 {v(t+2)}, {s(sNB)}, {v(t)}
    v_lshlrev_b32 {v(t+2)}, 8, {v(t+2)}
    v_lshl_add_u32 {v(t+2)}, {v(t+1)}, 4, {v(t+2)}
    v_lshlrev_b32 {v(t+3)}, 2, {v(t)}
    v_xor_b32 {v(t+3)}, {v(t+3)}, v0
    v_and_b32 {v(t+3)}, 15, {v(t+3)}
    v_lshlrev_b32 {v(t+4)}, 8, {v(t)}
    v_lshl_add_u32 {v(t+3)}, {v(t+3)}, 4, {v(t+4)}
    v_add_u32 {v(t+3)}, {128*256}, {v(t+3)}
    s_lshl_b32 {s(sT0)}, {s(sW)}, 10""")
    prof("addr")
    for k in range(3):
        e(f"""s_add_u32 m0, {s(sT0)}, {HT + 8192*k}
        v_add_u32 {v(t+5)}, {8192*k}, {v(t+2)}
        buffer_load_dwordx4 {v(t+5)}, {s(rH,4)}, 0 offen lds""")
    prof("hdma")
    for k in range(4):
        e(f"""s_add_u32 m0, {s(sT0)}, {W2 + 8192*k}
        v_add_u32 {v(t+5)}, {8192*k}, {v(t+3)}
        buffer_load_dwordx4 {v(t+5)}, {s(rWE,4)}, 0 offen lds""")
    e(f"""s_cmp_lg_u32 {s(sW)}, 0
    s_cbranch_scc1 K1_no4
    s_mov_b32 m0, {HT + 8192*3}
    v_add_u32 {v(t+5)}, {8192*3}, {v(t+2)}
    buffer_load_dwordx4 {v(t+5)}, {s(rH,4)}, 0 offen lds""")
    e.label("K1_no4")
    prof("wdma")
    e(f"""v_mov_b32 {v(t)}, 0
    v_lshlrev_b32 {v(t+1)}, 1, v0
    v_and_b32 {v(t+1)}, 0x3fc, {v(t+1)}
    ds_write_b32 {v(t+1)}, {v(t)} offset:{CNT}
    s_mov_b32 {s(sC)}, {hex(NEG_LOG2E)}
    s_mov_b32 {s(sC+1)}, {hex(NEG_LOG2E)}
    s_waitcnt lgkmcnt(0)
    s_barrier""")
    prof("bar1")
    e(f"""s_cmp_eq_u32 {s(sW)}, 7
    s_cbranch_scc1 K1_side
    s_mov_b64 exec, {s(sEM,2)}
    s_cbranch_execz K1_rank_done
    v_mov_b32 {v(t+8)}, 8
    s_movk_i32 {s(sT0)}, {-NB}
    s_waitcnt vmcnt(7)""")
    prof("edges")
    for i in range(4):
        e(f"""v_mul_u32_u24 {v(t+i)}, 21400, {v(vDST+i)}
        v_lshrrev_b32 {v(t+i)}, 21, {v(t+i)}
        v_lshlrev_b32 {v(vCA+i)}, 2, {v(t+i)}
        ds_add_rtn_u32 {v(vRK+i)}, {v(vCA+i)}, {v(t+8)} offset:{CNT}""")
    for i in range(4):
        e(f"v_mad_i32_i24 {v(t+i)}, {v(t+i)}, {s(sT0)}, {v(vDST+i)}")
        e(f"v_lshl_or_b32 {v(vREC+2*i)}, {v(t+i)}, 17, {v(vSRC+i)}")
        if i & 1:
            e(f"v_lshrrev_b32 {v(t+4)}, 16, {v(vEA+i//2)}")
        else:
            e(f"v_and_b32 {v(t+4)}, 0xffff, {v(vEA+i//2)}")
        e(f"v_lshl_or_b32 {v(vREC+2*i+1)}, {v(t+i)}, 20, {v(t+4)}")
    e("s_branch K1_rank_done")
    e.label("K1_side")
    e(f"""s_add_u32 {s(sT0)}, {s(sNB)}, {NB}
    s_min_u32 {s(sT0)}, {s(sT0)}, {N}""")
    addptr(e, sP, pWS, WS_PS)
    for i in range(8):
        e(f"v_mov_b32 {v(t+8+i)}, 0")
    e(f"""v_add_u32 {v(t)}, {s(sNB)}, {v(vL)}
    v_add_u32 {v(t+1)}, 64, {v(t)}
    v_mul_u32_u24 {v(t+2)}, 6, {v(t)}
    v_lshlrev_b32 {v(t+3)}, 4, {v(t)}
    v_cmp_gt_u32 vcc, {s(sT0)}, {v(t)}
    v_cmp_gt_u32 {s(sC2,2)}, {s(sT0)}, {v(t+1)}
    s_mov_b64 exec, vcc""")
    for i in range(3):
        e(f"global_load_ushort {v(t+9+i)}, {v(t+2)}, {s(pPOS,2)} offset:{2*i}")
    e(f"""s_mov_b64 exec, {s(sC2,2)}
    s_cbranch_execz K1_ps1""")
    for i in range(3):
        e(f"global_load_ushort {v(t+13+i)}, {v(t+2)}, {s(pPOS,2)} offset:{384+2*i}")
    e.label("K1_ps1")
    e(f"""s_mov_b64 exec, -1
    s_cmp_ge_u32 s2, 96
    s_cbranch_scc1 K1_nowf
    s_and_b32 {s(sT0)}, s2, 7
    s_bfe_u32 {s(sT1)}, s2, {hex((2 << 16) | 3)}
    s_lshl_b32 {s(sT1)}, {s(sT1)}, 6
    v_and_b32 {v(t+4)}, 31, {v(vL)}
    v_lshl_add_u32 {v(t+4)}, {v(t+4)}, 1, {s(sT1)}
    v_lshrrev_b32 {v(t+5)}, 5, {v(vL)}
    s_cmp_ge_u32 s2, 64
    s_cbranch_scc1 K1_wf2
    s_cmp_ge_u32 s2, 32
    s_cselect_b32 {s(sP+2)}, {s(pWH)}, {s(pWE)}
    s_cselect_b32 {s(sP+3)}, {s(pWH+1)}, {s(pWE+1)}
    s_lshl_b32 {s(sT0)}, {s(sT0)}, 12
    v_lshl_add_u32 {v(t+4)}, {v(t+5)}, 11, {v(t+4)}
    v_add_u32 {v(t+4)}, {s(sT0)}, {v(t+4)}""")
    for j in range(8):
        e(f"global_load_ushort {v(t+16+j//2+4*(j&1))}, {v(t+4)}, {s(sP+2,2)} offset:{256*j}")
    e("s_branch K1_wfst")
    e.label("K1_wf2")
    e(f"""s_lshl_b32 {s(sT0)}, {s(sT0)}, 10
    s_add_u32 {s(sT0)}, {s(sT0)}, {128*256}
    v_lshl_add_u32 {v(t+4)}, {v(t+5)}, 9, {v(t+4)}
    v_add_u32 {v(t+4)}, {s(sT0)}, {v(t+4)}
    v_add_u32 {v(t+5)}, 8192, {v(t+4)}
    v_add_u32 {v(t+6)}, 16384, {v(t+4)}
    v_add_u32 {v(t+7)}, 24576, {v(t+4)}""")
    for j in range(8):
        e(f"global_load_ushort {v(t+16+j//2+4*(j&1))}, {v(t+4+(j&3))}, {s(pWH,2)} offset:{256*(j//4)}")
    e.label("K1_wfst")
    e(f"""s_lshl_b32 {s(sT0)}, s2, 10
    s_add_u32 {s(sT0)}, {s(sT0)}, {hex(WS_WF)}
    v_lshl_add_u32 {v(t+4)}, {v(vL)}, 4, {s(sT0)}
    s_waitcnt vmcnt(0)""")
    for j in range(4):
        e(f"v_lshl_or_b32 {v(t+16+j)}, {v(t+20+j)}, 16, {v(t+16+j)}")
    e(f"global_store_dwordx4 {v(t+4)}, {v(t+16,4)}, {s(pWS,2)}")
    e.label("K1_nowf")
    e("s_waitcnt vmcnt(0)")
    for i in (1, 2, 3, 5, 6, 7):
        e(f"v_lshlrev_b32 {v(t+8+i)}, 16, {v(t+8+i)}")
    e(f"""global_store_dwordx4 {v(t+3)}, {v(t+8,4)}, {s(sP,2)}
    s_mov_b64 exec, {s(sC2,2)}
    s_cbranch_execz K1_rank_done
    global_store_dwordx4 {v(t+3)}, {v(t+12,4)}, {s(sP,2)} offset:1024""")
    e.label("K1_rank_done")
    e("s_mov_b64 exec, -1")
    aW, aH = t + 20, t + 21
    e(f"""s_and_b32 {s(sT0)}, {s(sW)}, 3
    s_lshr_b32 {s(sT1)}, {s(sW)}, 2
    v_bfe_u32 {v(t)}, {v(vL)}, 2, 2
    v_lshrrev_b32 {v(t+1)}, 5, {v(vL)}
    v_lshl_add_u32 {v(t+2)}, {v(t+1)}, 3, {v(t)}
    v_lshlrev_b32 {v(aW)}, 8, {v(t+2)}
    v_xor_b32 {v(t)}, {s(sT0)}, {v(t)}
    v_lshl_add_u32 {v(aW)}, {v(t)}, 6, {v(aW)}
    v_bfe_u32 {v(t)}, {v(vL)}, 4, 1
    v_lshl_add_u32 {v(aW)}, {v(t)}, 5, {v(aW)}
    v_and_b32 {v(t)}, 3, {v(vL)}
    v_lshl_add_u32 {v(aW)}, {v(t)}, 3, {v(aW)}
    v_add_u32 {v(aW)}, {W2}, {v(aW)}
    v_and_b32 {v(t)}, 31, {v(vL)}
    v_and_b32 {v(t+2)}, 15, {v(vL)}
    v_xor_b32 {v(t+2)}, {v(t+2)}, {v(t+1)}
    v_lshlrev_b32 {v(t+2)}, 4, {v(t+2)}
    v_lshl_add_u32 {v(aH)}, {v(t)}, 8, {v(t+2)}
    s_lshl_b32 {s(sC2)}, {s(sT1)}, 14
    v_add_u32 {v(aH)}, {s(sC2)}, {v(aH)}""")
    aO = t + 22
    e(f"""v_mul_u32_u24 {v(aO)}, 272, {v(t)}
    v_lshl_add_u32 {v(aO)}, {v(t+1)}, 3, {v(aO)}
    s_mul_i32 {s(sC2)}, {s(sT1)}, {64*272}
    s_lshl_b32 {s(sT0)}, {s(sT0)}, 6
    s_add_u32 {s(sC2)}, {s(sC2)}, {s(sT0)}
    s_add_u32 {s(sC2)}, {s(sC2)}, {OUT}
    v_add_u32 {v(aO)}, {s(sC2)}, {v(aO)}
    v_lshlrev_b32 {v(t+10)}, 4, {v(vL)}
    s_waitcnt vmcnt(0) lgkmcnt(0)
    s_barrier""")
    prof("bar2")
    c = t + 4
    e(f"ds_read_b128 {v(c,4)}, {v(t+10)} offset:{CNT}")
    for sidx in range(8):
        for u in range(2):
            e(f"ds_read_b64_tr_b16 {v(vWF+4*sidx+2*u,2)}, {v(aW)} offset:{(16*sidx+4*u)*256}")
    e(f"""s_waitcnt lgkmcnt(14)
    v_add_u32 {v(t+12)}, {v(c)}, {v(c+1)}
    v_add3_u32 {v(t+11)}, {v(t+12)}, {v(c+2)}, {v(c+3)}
    v_mov_b32 {v(t+9)}, {v(t+11)}""")
    scan64(e, t + 9)
    e(f"""v_sub_u32 {v(t+12)}, {v(t+9)}, {v(t+11)}
    v_add_u32 {v(t+13)}, {v(t+12)}, {v(c)}
    v_add_u32 {v(t+14)}, {v(t+13)}, {v(c+1)}
    v_add_u32 {v(t+15)}, {v(t+14)}, {v(c+2)}
    ds_write_b128 {v(t+10)}, {v(t+12,4)} offset:{BASE}
    s_cmp_lg_u32 {s(sW)}, 7
    s_cbranch_scc1 K1_notab""")
    for i in range(4):
        e(f"v_lshl_or_b32 {v(t+16+i)}, {v(c+i)}, 16, {v(t+12+i)}")
    e(f"""s_lshl_b32 {s(sT0)}, s2, 10
    s_add_u32 {s(sT0)}, {s(sT0)}, {hex(WS_TAB)}
    v_add_u32 {v(t+11)}, {s(sT0)}, {v(t+10)}
    global_store_dwordx4 {v(t+11)}, {v(t+16,4)}, {s(pWS,2)}""")
    e.label("K1_notab")
    prof("scan")
    e(f"s_mov_b64 exec, {s(sEM,2)}")
    for i in range(4):
        e(f"ds_read_b32 {v(t+i)}, {v(vCA+i)} offset:{BASE}")
    e("s_mov_b64 exec, -1")
    for sidx in range(8):
        if sidx:
            e(f"v_xor_b32 {v(t+23)}, {32*sidx}, {v(aH)}")
        a = aH if sidx == 0 else t + 23
        e(f"ds_read_b128 {v(vHF+4*sidx,4)}, {v(a)} offset:{HT}")
        e(f"ds_read_b128 {v(vHF+32+4*sidx,4)}, {v(a)} offset:{HT+8192}")
    e(f"""s_waitcnt lgkmcnt(14)
    s_mov_b64 exec, {s(sEM,2)}""")
    for i in range(4):
        e(f"v_add_u32 {v(t+i)}, {v(t+i)}, {v(vRK+i)}")
        e(f"ds_write_b64 {v(t+i)}, {v(vREC+2*i,2)} offset:{RECS}")
    e("s_mov_b64 exec, -1")
    e("s_waitcnt lgkmcnt(0)")
    prof("placed")
    for sidx in range(8):
        for r in range(2):
            a = vACC + 16 * r
            e(f"{MFMA} {v(a,16)}, {v(vWF+4*sidx,4)}, {v(vHF+32*r+4*sidx,4)}, {v(a,16) if sidx else 0}")
    e("s_nop 10")
    prof("mfma")
    for r in range(2):
        a = vACC + 16 * r
        for k in range(8):
            e(f"v_pk_mul_f32 {v(a+2*k,2)}, {v(a+2*k,2)}, {s(sC,2)}")
        for k in range(8):
            e(f"v_cvt_pk_bf16_f32 {v(vHF+8*r+k)}, {v(a+2*k)}, {v(a+2*k+1)}")
        for j in range(4):
            e(f"ds_write_b64 {v(aO)}, {v(vHF+8*r+2*j,2)} offset:{r*32*272 + 16*j}")
    e(f"""v_lshlrev_b32 {v(t)}, 4, v0
    v_lshrrev_b32 {v(t+1)}, 4, v0
    v_lshl_add_u32 {v(t+1)}, {v(t+1)}, 4, {v(t)}
    v_add_u32 {v(t+1)}, {OUT}, {v(t+1)}
    s_mul_i32 {s(sT0)}, s2, {CH*8}
    s_add_u32 {s(sT0)}, {s(sT0)}, {hex(WS_REC)}
    v_add_u32 {v(t+2)}, {s(sT0)}, {v(t)}
    v_add_u32 {v(t+3)}, 8192, {v(t+2)}
    s_lshl_b32 {s(sT0)}, {s(sNB)}, 8
    v_add_u32 {v(t+4)}, {s(sT0)}, {v(t)}
    v_add_u32 {v(t+5)}, 8192, {v(t+4)}
    v_add_u32 {v(t+6)}, 16384, {v(t+4)}
    v_add_u32 {v(t+7)}, 24576, {v(t+4)}
    s_movk_i32 {s(sT0)}, {CH*8//16 - 512}
    v_cmp_gt_u32 vcc, {s(sT0)}, v0
    s_waitcnt lgkmcnt(0)
    s_barrier""")
    prof("bar3")
    d = vWF
    e(f"ds_read_b128 {v(d,4)}, {v(t)} offset:{RECS}")
    e(f"ds_read_b128 {v(d+4,4)}, {v(t)} offset:{RECS+8192}")
    for k in range(4):
        e(f"ds_read_b128 {v(d+8+4*k,4)}, {v(t+1)} offset:{8704*k}")
    e(f"""s_waitcnt lgkmcnt(5)
    global_store_dwordx4 {v(t+2)}, {v(d,4)}, {s(pWS,2)}""")
    for k in range(3):
        e(f"s_waitcnt lgkmcnt({3-k})")
        e(f"global_store_dwordx4 {v(t+4+k)}, {v(d+8+4*k,4)}, {s(pWS,2)}")
    e(f"""s_mov_b64 exec, vcc
    s_cbranch_execz K1_fin
    global_store_dwordx4 {v(t+3)}, {v(d+4,4)}, {s(pWS,2)}
    s_cmp_lg_u32 {s(sW)}, 0
    s_cbranch_scc1 K1_fin
    s_mov_b32 exec_hi, 0
    s_waitcnt lgkmcnt(0)
    global_store_dwordx4 {v(t+7)}, {v(d+20,4)}, {s(pWS,2)}""")
    e.label("K1_fin")
    if OPT["prof"]:
        e("s_mov_b64 exec, -1")
        prof("stores")
        e("s_waitcnt vmcnt(0)")
        prof("drained")
        prof.store(pWS, sW, 0, t + 10)
    if OPT["spin"]:
        prof.spin(pWS, sW, t + 10, False)
    e.label("K1_end")
    e("s_endpgm")
    return e, lds, 192, prof.names


def k2():
    e = Asm()
    CAP = 2048
    L = Alloc(0, 160 * 1024)
    CNT = L(512, 16)
    BASE = L(512, 16)
    FLAG = L(16, 16)
    HT = L(25600, 256)
    STG = L(8 * 4096, 256)
    PLANE = 106 * 64
    AT = L(4 * PLANE, 16)
    Z0 = L(0, 16)
    MT = L(106 * 272, 16)
    PACC = L(105 * 48, 16)
    IMG = L(8 * 2560, 16)
    Z1 = L(0, 16)
    LIST = L((CAP + 64) * 8, 16)
    PD = L(2048, 16)
    lds = L.p
    assert Z1 - Z0 <= 7 * 8192 and Z0 + 7 * 8192 <= PD

    S = Alloc(4, 102)
    pH = S(2, 4); pPOS = S(2); pEA = S(2); pSRC = S(2); pDST = S(2); pWE = S(2); pWX = S(2); pWH = S(2)
    pOUT = S(2, 4); pDBG = S(2); pWS = S(2)
    rH = S(4, 4); rREC = S(4, 4); rBT = S(4, 4); rPSI = S(4, 4)
    rPS = rREC
    sW = S(); sNB = S(); sOff = S(); sLim = S(); sFirst = S(); sT0 = S(); sT1 = S(); sT2 = S()
    sC = S(2, 2); sM = S(2, 2); sWF = S(2, 2)
    sP8 = S(); sEnd8 = S(); sBN = S(); sBC = S(); sBP = S(); sSTG = S(); s128 = S(); sMore = S(); sFN = S(); sLN = S()
    sK0 = pDBG; sK1 = pDBG + 1
    sMK = pPOS
    masks = [pPOS, pEA, pSRC, pDST] + [S(2, 2) for _ in range(8)]
    prof = Prof(e, S(18, 2), 14, "2")

    V = Alloc(0, 256)
    ACC = V(64)
    X = V(16); T = V(16)
    BR = V(16); AO = V(4); SO = V(4); S4 = V(8)
    MP = V(8); ID = V(8)
    IDX = V(8); G = V(2); REC = V(2); PSV = V(2); PDV = V(2); WX = V(8)
    aBR = V(4); aSO = V(); aS4 = V(); aAO = V(); aAOc = V(); vH32 = V(); aLP = V(); aLQ = V()
    aIM = V(); aIB = V(); aIBc = V(); aXT = V(); aPDc = V(); vD = V(); vP = V(); vONE = V(); vZ = V()
    aFMc = V(); aFPc = V(); aF = vD; vL = V()
    vTID = MP
    WH1 = V(32, 2); WH2 = V(32, 2)
    nvgpr = V.p

    R0 = ACC
    CA = ACC + 24
    RK = ACC + 36
    t = ACC + 48
    W1 = WH1
    HF0, HF1 = X, BR
    GA = WH2

    e.label("egnn_main_kernel")
    e(f"""s_cmp_ge_u32 s2, {NWG}
    s_cbranch_scc1 K2_end""")
    if OPT["spin"]:
        prof("entry")
    e(f"""s_load_dwordx16 {s(pH,16)}, s[0:1], 0
    s_load_dwordx4 {s(pOUT,4)}, s[0:1], 64
    s_load_dwordx2 {s(pWS,2)}, s[0:1], 80""")
    prof("start")
    e(f"""v_and_b32 {v(vL)}, 63, v0
    v_lshrrev_b32 {v(t)}, 6, v0
    s_mul_i32 {s(sNB)}, s2, {NB}
    v_readfirstlane_b32 {s(sW)}, {v(t)}
    s_mov_b32 {s(sOff)}, 0
    s_mov_b32 {s(sLim)}, {24*8}
    s_mov_b32 {s(sFirst)}, 1
    s_mov_b32 {s(sC)}, {hex(NEG_LOG2E)}
    s_mov_b32 {s(sC+1)}, {hex(NEG_LOG2E)}
    s_movk_i32 {s(s128)}, 128
    s_waitcnt lgkmcnt(0)
    s_movk_i32 {s(sK0)}, 0x3f80
    s_mov_b32 {s(sK1)}, 0x3f800000""")
    srd(e, rREC, s(pWS), s(pWS + 1), hex(WS_PROF))
    e.label("K2_round")
    vTAB = t + 15
    e(f"""v_lshl_add_u32 {v(vTID)}, {s(sW)}, 6, {v(vL)}
    v_lshrrev_b32 {v(t)}, 1, {v(vTID)}
    s_lshl_b32 {s(sT0)}, s2, 2
    s_add_u32 {s(sT0)}, {s(sT0)}, {hex(WS_TAB)}
    v_lshl_add_u32 {v(t+1)}, {v(t)}, 10, {s(sT0)}
    global_load_dword {v(vTAB)}, {v(t+1)}, {s(pWS,2)}
    v_mov_b32 {v(vZ)}, 0
    v_and_b32 {v(t+1)}, 0x1fc, {v(vTID)}
    ds_write_b32 {v(t+1)}, {v(vZ)} offset:{CNT}
    ds_write_b32 {v(vZ)}, {v(vZ)} offset:{FLAG}
    ds_write_b32 {v(vZ)}, {v(vZ)} offset:{FLAG+4}
    s_cmp_eq_u32 {s(sFirst)}, 0
    s_cbranch_scc1 K2_nf1""")
    srd(e, rH, s(pH), s(pH + 1), N * 256)
    e(f"""v_lshrrev_b32 {v(t+2)}, 4, {v(vTID)}
    v_xor_b32 {v(t+3)}, {v(t+2)}, {v(vTID)}
    v_and_b32 {v(t+3)}, 15, {v(t+3)}
    v_add_u32 {v(t+2)}, {s(sNB)}, {v(t+2)}
    v_lshlrev_b32 {v(t+2)}, 8, {v(t+2)}
    v_lshl_add_u32 {v(t+2)}, {v(t+3)}, 4, {v(t+2)}
    s_lshl_b32 {s(sT0)}, {s(sW)}, 10""")
    for k in range(3):
        e(f"""s_add_u32 m0, {s(sT0)}, {HT + 8192*k}
        v_add_u32 {v(t+3)}, {8192*k}, {v(t+2)}
        buffer_load_dwordx4 {v(t+3)}, {s(rH,4)}, 0 offen lds""")
    e(f"""s_and_b32 {s(sT1)}, {s(sW)}, 3
    s_lshl_b32 {s(sT1)}, {s(sT1)}, 13
    s_add_u32 {s(sT1)}, {s(sT1)}, {hex(WS_WF)}
    s_add_u32 {s(sWF)}, {s(pWS)}, {s(sT1)}
    s_addc_u32 {s(sWF+1)}, {s(pWS+1)}, 0
    v_lshlrev_b32 {v(t+4)}, 4, {v(vL)}
    v_add_u32 {v(t+5)}, 4096, {v(t+4)}""")
    for k in range(8):
        e(f"global_load_dwordx4 {v(W1+4*k,4)}, {v(t+4+k//4)}, {s(sWF,2)} offset:{1024*(k%4)}")
    e(f"""v_and_b32 {v(t+6)}, 31, {v(vL)}
    v_lshlrev_b32 {v(t+7)}, 1, {v(t+6)}""")
    for k in range(4):
        e(f"global_load_ushort {v(WX+2*k)}, {v(t+7)}, {s(pWX,2)} offset:{64*k}")
    e(f"""s_cmp_lg_u32 {s(sW)}, 0
    s_cbranch_scc1 K2_j1
    s_mov_b32 m0, {HT + 8192*3}
    v_add_u32 {v(t+3)}, {8192*3}, {v(t+2)}
    buffer_load_dwordx4 {v(t+3)}, {s(rH,4)}, 0 offen lds
    s_branch K2_j3""")
    e.label("K2_j1")
    e(f"""s_cmp_gt_u32 {s(sW)}, 2
    s_cbranch_scc1 K2_j2
    s_add_u32 m0, {s(sT0)}, {PD - 1024}
    s_lshl_b32 {s(sT1)}, {s(sNB)}, 4
    s_add_u32 {s(sT1)}, {s(sT1)}, {hex(WS_PS - 1024)}
    v_lshl_add_u32 {v(t+3)}, {v(vTID)}, 4, {s(sT1)}
    buffer_load_dwordx4 {v(t+3)}, {s(rPS,4)}, 0 offen lds
    s_branch K2_j3""")
    e.label("K2_j2")
    e(f"""s_cmp_lt_u32 {s(sW)}, 6
    s_cbranch_scc1 K2_j3
    v_lshlrev_b32 {v(t+3)}, 1, {v(vTID)}
    v_add_u32 {v(t+3)}, {256*256 - 768}, {v(t+3)}
    global_load_ushort {v(PSV)}, {v(t+3)}, {s(pWE,2)}
    global_load_ushort {v(PSV+1)}, {v(t+3)}, {s(pWE,2)} offset:256""")
    e.label("K2_j3")
    for k in range(4):
        e(f"v_mov_b32 {v(t+8+k)}, 0")
    e(f"""v_lshlrev_b32 {v(t+3)}, 4, {v(vTID)}
    v_add_u32 {v(t+3)}, {Z0}, {v(t+3)}""")
    for k in range(7):
        e(f"ds_write_b128 {v(t+3)}, {v(t+8,4)} offset:{8192*k}")
    srd(e, rBT, s(pWS), s(pWS + 1), N, stride=256)
    addptr(e, rPSI, pWS, WS_PS)
    e(f"""s_or_b32 {s(rPSI+1)}, {s(rPSI+1)}, {hex(16 << 16)}
    s_mov_b32 {s(rPSI+2)}, {N}
    s_mov_b32 {s(rPSI+3)}, 0x20000""")
    vE, vH = t + 6, t + 7
    e(f"""v_lshrrev_b32 {v(vH)}, 5, {v(vL)}
    s_mul_i32 {s(sT1)}, {s(sW)}, 2560
    s_add_u32 {s(sT1)}, {s(sT1)}, {IMG}
    s_lshl_b32 {s(sSTG)}, {s(sW)}, 12
    s_add_u32 {s(sSTG)}, {s(sSTG)}, {STG}
    v_mul_u32_u24 {v(t+2)}, 80, {v(vE)}
    v_add_u32 {v(t+2)}, {s(sT1)}, {v(t+2)}
    v_lshl_add_u32 {v(aIBc)}, {v(vH)}, 5, {v(t+2)}
    v_lshl_add_u32 {v(aSO)}, {v(vH)}, 6, {v(t+2)}
    v_lshl_add_u32 {v(aXT)}, {v(vH)}, 3, {v(t+2)}
    v_lshlrev_b32 {v(G+1)}, 3, {v(vH)}
    v_add_u32 {v(aPDc)}, {PD}, {v(G+1)}
    v_mov_b32 {v(vONE)}, 0x3f80
    v_bfe_u32 {v(t+2)}, {v(vL)}, 2, 2
    v_bfe_u32 {v(t+3)}, {v(vL)}, 4, 1
    v_and_b32 {v(t+4)}, 3, {v(vL)}
    v_lshlrev_b32 {v(t+4)}, 3, {v(t+4)}
    v_lshl_add_u32 {v(t+4)}, {v(t+3)}, 5, {v(t+4)}
    v_lshl_add_u32 {v(t+5)}, {v(vH)}, 2, {v(t+2)}
    v_mul_u32_u24 {v(t+5)}, 80, {v(t+5)}
    v_add3_u32 {v(aS4)}, {v(t+5)}, {v(t+4)}, {s(sT1)}
    v_mul_u32_u24 {v(t+5)}, {NB}, {v(vH)}
    v_add_u32 {v(t+5)}, {v(t+5)}, {v(t+2)}
    v_lshl_add_u32 {v(t+5)}, {v(t+5)}, 6, {v(t+4)}
    v_add_u32 {v(aAOc)}, {AT}, {v(t+5)}
    v_lshlrev_b32 {v(vH32)}, 5, {v(vH)}
    v_sub_u32 {v(vH32)}, 32, {v(vH32)}""")
    e(f"""v_bfe_u32 {v(t+2)}, {v(vL)}, 1, 3
    v_xor_b32 {v(t+2)}, {v(t+2)}, {v(vH)}
    v_lshlrev_b32 {v(t+2)}, 4, {v(t+2)}
    v_lshl_add_u32 {v(t+2)}, {v(vE)}, 7, {v(t+2)}
    v_add_u32 {v(aBR)}, {s(sSTG)}, {v(t+2)}""")
    for k in range(1, 4):
        e(f"v_xor_b32 {v(aBR+k)}, {32*k}, {v(aBR)}")
    e(f"""v_lshrrev_b32 {v(t+2)}, 4, {v(vL)}
    v_xor_b32 {v(t+2)}, {v(t+2)}, {v(vL)}
    v_and_b32 {v(t+2)}, 7, {v(t+2)}
    v_lshlrev_b32 {v(IDX+1)}, 4, {v(t+2)}
    v_xor_b32 {v(IDX+3)}, 64, {v(IDX+1)}
    v_mov_b32 {v(IDX+5)}, {v(IDX+1)}
    v_mov_b32 {v(IDX+7)}, {v(IDX+3)}""")
    e(f"""v_mul_u32_u24 {v(t+2)}, {4*272}, {v(vH)}
    v_lshl_add_u32 {v(t+2)}, {v(vE)}, 3, {v(t+2)}
    v_add_u32 {v(aFMc)}, {MT}, {v(t+2)}
    v_bfe_u32 {v(t+2)}, {v(vL)}, 2, 2
    v_lshl_add_u32 {v(t+2)}, {v(vH)}, 2, {v(t+2)}
    v_mul_u32_u24 {v(t+2)}, 48, {v(t+2)}
    v_bfe_u32 {v(t+3)}, {v(vL)}, 4, 1
    v_lshl_add_u32 {v(t+2)}, {v(t+3)}, 3, {v(t+2)}
    v_add_u32 {v(aFPc)}, {PACC}, {v(t+2)}""")
    e(f"""v_lshlrev_b32 {v(t+2)}, 3, {v(vH)}
    v_sub_u32 {v(t+2)}, {v(vE)}, {v(t+2)}
    v_and_b32 {v(t+3)}, 1, {v(vL)}
    v_lshlrev_b32 {v(t+3)}, 4, {v(t+3)}
    v_lshlrev_b32 {v(t+3)}, {v(t+3)}, {v(vONE)}
    v_ashrrev_i32 {v(t+2)}, 1, {v(t+2)}""")
    for k in range(8):
        e(f"""v_cmp_eq_u32 vcc, {8*(k//4) + k%4}, {v(t+2)}
        s_nop 1
        v_cndmask_b32 {v(ID+k)}, 0, {v(t+3)}, vcc""")
    e("s_waitcnt vmcnt(15)")
    e("s_branch K2_nf2")
    e.label("K2_nf1")
    e("s_waitcnt vmcnt(0)")
    e.label("K2_nf2")
    prof("tab")
    vLC, vRA = t + 2, t + 3
    e(f"""v_lshrrev_b32 {v(vLC)}, 16, {v(vTAB)}
    v_subrev_u32 {v(vLC)}, {s(sOff)}, {v(vLC)}
    v_cmp_lt_i32 vcc, {s(sLim)}, {v(vLC)}
    v_min_i32 {v(vLC)}, {s(sLim)}, {v(vLC)}
    s_mov_b64 {s(sM,2)}, vcc
    v_and_b32 {v(t+4)}, 1, {v(vTID)}
    v_lshlrev_b32 {v(t+4)}, 4, {v(t+4)}
    v_sub_u32 {v(vLC)}, {v(vLC)}, {v(t+4)}
    v_and_b32 {v(vRA)}, 0xffff, {v(vTAB)}
    v_mul_u32_u24 {v(t+5)}, {CH*8}, {v(t)}
    s_add_u32 {s(sT0)}, {s(sOff)}, {hex(WS_REC)}
    v_add3_u32 {v(vRA)}, {v(vRA)}, {v(t+5)}, {v(t+4)}
    v_add_u32 {v(vRA)}, {s(sT0)}, {v(vRA)}
    v_mov_b32 {v(t+5)}, 0x7ffffff0""")
    for j in range(6):
        e(f"s_movk_i32 {s(sT0)}, {32*j}")
        e(f"v_cmp_lt_i32 {s(masks[2*j],2)}, {s(sT0)}, {v(vLC)}")
        e(f"s_movk_i32 {s(sT1)}, {32*j+8}")
        e(f"v_cmp_lt_i32 {s(masks[2*j+1],2)}, {s(sT1)}, {v(vLC)}")
        e(f"v_cndmask_b32 {v(t+8+j)}, {v(t+5)}, {v(vRA)}, {s(masks[2*j],2)}")
        e(f"buffer_load_dwordx4 {v(R0+4*j,4)}, {v(t+8+j)}, {s(rREC,4)}, 0 offen offset:{32*j}")
    e(f"""s_waitcnt vmcnt(6) lgkmcnt(0)
    s_barrier""")
    prof("bar1")
    e(f"""s_mov_b64 exec, {s(sM,2)}
    ds_write_b32 {v(vZ)}, {v(vONE)} offset:{FLAG}
    s_mov_b64 exec, -1
    s_cmp_eq_u32 {s(sFirst)}, 0
    s_cbranch_scc1 K2_nf3""")
    aH = t + 4

    def h_addr(dst, tmp, rot):
        e(f"""v_and_b32 {v(tmp)}, 15, {v(vL)}
        v_lshrrev_b32 {v(dst)}, 5, {v(vL)}
        v_xor_b32 {v(tmp)}, {v(tmp)}, {v(dst)}
        v_lshlrev_b32 {v(tmp)}, 4, {v(tmp)}
        v_and_b32 {v(dst)}, 31, {v(vL)}
        v_lshl_add_u32 {v(dst)}, {v(dst)}, 8, {v(tmp)}
        s_lshr_b32 {s(sT0)}, {s(sW)}, 2
        s_lshl_b32 {s(sT0)}, {s(sT0)}, 14""")
        if rot:
            e(f"""s_and_b32 {s(sT1)}, {s(sW)}, 3
            s_lshl_b32 {s(sT1)}, {s(sT1)}, 6
            s_or_b32 {s(sT0)}, {s(sT0)}, {s(sT1)}""")
        e(f"v_xor_b32 {v(dst)}, {s(sT0)}, {v(dst)}")

    def h_frags(a, tmp):
        for k in range(8):
            if k:
                e(f"v_xor_b32 {v(tmp)}, {32*k}, {v(a)}")
            x = tmp if k else a
            e(f"ds_read_b128 {v(HF0+4*k,4)}, {v(x)} offset:{HT}")
            e(f"ds_read_b128 {v(HF1+4*k,4)}, {v(x)} offset:{HT+8192}")

    h_addr(aH, t + 5, False)
    h_frags(aH, t + 5)
    aA = t + 5
    e(f"""s_and_b32 {s(sT1)}, {s(sW)}, 3
    s_mul_i32 {s(sT1)}, {s(sT1)}, {PLANE}
    s_lshr_b32 {s(sT0)}, {s(sW)}, 2
    s_lshl_b32 {s(sT0)}, {s(sT0)}, 12
    s_add_u32 {s(sT1)}, {s(sT1)}, {s(sT0)}
    s_add_u32 {s(sT1)}, {s(sT1)}, {AT}
    v_lshlrev_b32 {v(aA)}, 1, {v(vE)}
    v_lshl_add_u32 {v(aA)}, {v(vH)}, 8, {v(aA)}
    v_add_u32 {v(aA)}, {s(sT1)}, {v(aA)}""")
    for k in range(8):
        e(f"s_waitcnt lgkmcnt({14-2*k})")
        for r in range(2):
            a = GA + 16 * r
            e(f"{MFMA} {v(a,16)}, {v((HF0,HF1)[r]+4*k,4)}, {v(W1+4*k,4)}, {v(a,16) if k else 0}")
    e(f"""s_cmp_lt_u32 {s(sW)}, 6
    s_cbranch_scc1 K2_j4
    v_lshlrev_b32 {v(PSV)}, 16, {v(PSV)}
    v_lshlrev_b32 {v(PSV+1)}, 16, {v(PSV+1)}
    v_mul_f32 {v(PSV)}, {s(sC)}, {v(PSV)}
    v_mul_f32 {v(PSV+1)}, {s(sC)}, {v(PSV+1)}
    v_cvt_pk_bf16_f32 {v(PDV)}, {v(PSV)}, {v(PSV+1)}
    v_lshlrev_b32 {v(REC)}, 16, {v(PDV)}
    v_and_b32 {v(REC+1)}, 0xffff0000, {v(PDV)}
    v_sub_f32 {v(PSV)}, {v(PSV)}, {v(REC)}
    v_sub_f32 {v(PSV+1)}, {v(PSV+1)}, {v(REC+1)}
    v_cvt_pk_bf16_f32 {v(PDV+1)}, {v(PSV)}, {v(PSV+1)}
    v_bfe_u32 {v(REC)}, {v(vTID)}, 5, 2
    v_mul_u32_u24 {v(REC)}, {PLANE}, {v(REC)}
    v_lshl_add_u32 {v(REC)}, {v(vE)}, 1, {v(REC)}
    v_add_u32 {v(REC)}, {AT + NB*64}, {v(REC)}
    ds_write_b16 {v(REC)}, {v(PDV)}
    ds_write_b16 {v(REC)}, {v(PDV+1)} offset:64
    ds_write_b16_d16_hi {v(REC)}, {v(PDV)} offset:128
    ds_write_b16 {v(REC)}, {v(vZ)} offset:192
    ds_write_b16 {v(REC)}, {v(PDV)} offset:256
    ds_write_b16 {v(REC)}, {v(PDV+1)} offset:320
    ds_write_b16_d16_hi {v(REC)}, {v(PDV+1)} offset:384
    ds_write_b16 {v(REC)}, {v(vZ)} offset:448""")
    e.label("K2_j4")
    for k in range(4):
        e(f"v_lshlrev_b32 {v(WX+2*k+1)}, 16, {v(WX+2*k)}")
        e(f"v_lshlrev_b32 {v(WX+2*k)}, 16, {v(WX+2*k)}")
    e("s_nop 0")

    def a_out(r, npairs):
        a = GA + 16 * r
        for k in range(npairs):
            e(f"v_pk_mul_f32 {v(a+2*k,2)}, {v(a+2*k,2)}, {s(sC,2)}")
        for k in range(npairs):
            e(f"v_cvt_pk_bf16_f32 {v(a+2*k)}, {v(a+2*k)}, {v(a+2*k+1)}")
        for k in range(npairs):
            row = 32 * r + 8 * (k // 2) + 2 * (k % 2)
            e(f"ds_write_b16 {v(aA)}, {v(a+2*k)} offset:{row*64}")
            e(f"ds_write_b16_d16_hi {v(aA)}, {v(a+2*k)} offset:{row*64+64}")

    a_out(0, 8)
    e(f"""s_cmp_ge_u32 {s(sW)}, 4
    s_cbranch_scc1 K2_j5""")
    a_out(1, 8)
    e("s_branch K2_nf3")
    e.label("K2_j5")
    e("s_mov_b32 exec_hi, 0")
    a_out(1, 1)
    e("s_mov_b64 exec, -1")
    e.label("K2_nf3")
    prof("agemm")
    e(f"""v_mov_b32 {v(t+4)}, 8
    s_waitcnt vmcnt(0)""")
    prof("recs")
    for k in range(12):
        e(f"s_mov_b64 exec, {s(masks[k],2)}")
        if k % 2 == 0:
            e("s_cbranch_execz K2_rk")
        e(f"""v_lshrrev_b32 {v(CA+k)}, 18, {v(R0+2*k+1)}
        ds_add_rtn_u32 {v(RK+k)}, {v(CA+k)}, {v(t+4)} offset:{CNT}""")
    e.label("K2_rk")
    e(f"""s_mov_b64 exec, -1
    v_lshlrev_b32 {v(t+5)}, 3, {v(vL)}
    s_waitcnt lgkmcnt(0)
    s_barrier""")
    prof("bar2")
    e(f"""ds_read_b64 {v(t+8,2)}, {v(t+5)} offset:{CNT}
    ds_read_b32 {v(t+12)}, {v(vZ)} offset:{FLAG}
    s_waitcnt lgkmcnt(0)
    v_add_u32 {v(t+9)}, {v(t+8)}, {v(t+9)}
    v_mov_b32 {v(t+13)}, {v(t+9)}
    v_readfirstlane_b32 {s(sMore)}, {v(t+12)}""")
    scan64(e, t + 13)
    e(f"""v_sub_u32 {v(t+10)}, {v(t+13)}, {v(t+9)}
    v_readlane_b32 {s(sEnd8)}, {v(t+13)}, 63
    v_add_u32 {v(t+10)}, {LIST}, {v(t+10)}
    v_add_u32 {v(t+11)}, {v(t+10)}, {v(t+8)}
    ds_write_b64 {v(t+5)}, {v(t+10,2)} offset:{BASE}
    s_mov_b32 {s(sFirst)}, 0
    s_cmp_le_u32 {s(sEnd8)}, {CAP*8}
    s_cbranch_scc1 K2_fits
    s_cmp_eq_u32 {s(sLim)}, 64
    s_cbranch_scc1 K2_fits
    s_movk_i32 {s(sLim)}, 64
    s_waitcnt lgkmcnt(0)
    s_barrier
    s_branch K2_round""")
    e.label("K2_fits")
    for k in range(12):
        e(f"s_mov_b64 exec, {s(masks[k],2)}")
        if k % 2 == 0:
            e("s_cbranch_execz K2_pl1")
        e(f"ds_read_b32 {v(CA+k)}, {v(CA+k)} offset:{BASE}")
    e.label("K2_pl1")
    e(f"""s_mov_b64 exec, -1
    v_add_u32 {v(t+5)}, {s(sEnd8)}, {v(t+5)}
    v_add_u32 {v(t+5)}, {LIST}, {v(t+5)}
    v_mov_b32 {v(t+8)}, 0
    v_mov_b32 {v(t+9)}, 0
    ds_write_b64 {v(t+5)}, {v(t+8,2)}
    s_waitcnt lgkmcnt(0)""")
    for k in range(12):
        e(f"s_mov_b64 exec, {s(masks[k],2)}")
        if k % 2 == 0:
            e("s_cbranch_execz K2_pl2")
        e(f"""v_add_u32 {v(CA+k)}, {v(CA+k)}, {v(RK+k)}
        ds_write_b64 {v(CA+k)}, {v(R0+2*k,2)}""")
    e.label("K2_pl2")
    e(f"""s_mov_b64 exec, -1
    s_add_u32 {s(sT0)}, {s(sEnd8)}, 255
    s_lshr_b32 {s(sT0)}, {s(sT0)}, 8
    s_lshr_b32 {s(sT1)}, {s(sT0)}, 3
    s_and_b32 {s(sT0)}, {s(sT0)}, 7
    s_mul_i32 {s(sP8)}, {s(sT1)}, {s(sW)}
    s_min_u32 {s(sT2)}, {s(sW)}, {s(sT0)}
    s_add_u32 {s(sP8)}, {s(sP8)}, {s(sT2)}
    s_cmp_lt_u32 {s(sW)}, {s(sT0)}
    s_addc_u32 {s(sT1)}, {s(sT1)}, {s(sP8)}
    s_lshl_b32 {s(sP8)}, {s(sP8)}, 8
    s_lshl_b32 {s(sT1)}, {s(sT1)}, 8
    s_min_u32 {s(sEnd8)}, {s(sEnd8)}, {s(sT1)}
    s_add_u32 {s(sT0)}, {s(sP8)}, {LIST}
    v_and_b32 {v(aLP)}, 31, {v(vL)}
    v_lshl_add_u32 {v(aLP)}, {v(aLP)}, 3, {s(sT0)}
    v_and_b32 {v(aLQ)}, 0x38, {v(vL)}
    v_add_u32 {v(aLQ)}, {s(sT0)}, {v(aLQ)}
    s_movk_i32 {s(sBN)}, -1000
    s_movk_i32 {s(sBC)}, -1000
    s_waitcnt lgkmcnt(0)
    s_barrier""")
    prof("bar3")
    e(f"""s_cmp_ge_u32 {s(sP8)}, {s(sEnd8)}
    s_cbranch_scc1 K2_notiles""")

    uid = [0]

    def S0():
        uid[0] += 1
        u = uid[0]
        e(f"ds_read_b64 {v(REC,2)}, {v(aLP)}")
        e(f"ds_read_u16 {v(G)}, {v(aLP)}")
        for j in range(4):
            e(f"ds_read_u16 {v(IDX+2*j)}, {v(aLQ)} offset:{64*j}")
        e(f"""s_sub_u32 {s(sT0)}, {s(sEnd8)}, {s(sP8)}
        s_lshr_b32 {s(sT0)}, {s(sT0)}, 3
        s_min_u32 {s(sT0)}, {s(sT0)}, 32
        s_sub_u32 {s(sT1)}, {s(sT0)}, 1
        s_waitcnt lgkmcnt(4)
        v_readlane_b32 {s(sT1)}, {v(REC)}, {s(sT1)}
        v_add_u32_sdwa {v(vP)}, {v(aPDc)}, {v(REC+1)} dst_sel:DWORD dst_unused:UNUSED_PAD src0_sel:DWORD src1_sel:WORD_1
        buffer_load_dwordx2 {v(PSV,2)}, {v(G,2)}, {s(rPSI,4)}, 0 idxen offen
        ds_read_b64 {v(PDV,2)}, {v(vP)}
        s_lshr_b32 {s(sT1)}, {s(sT1)}, 16
        s_sub_u32 {s(sT1)}, {s(sT1)}, 16
        s_cmp_lt_i32 {s(sT1)}, {s(sBN)}
        s_cbranch_scc1 K2_s0_{u}
        v_readfirstlane_b32 {s(sT2)}, {v(REC)}
        s_lshr_b32 {s(sBN)}, {s(sT2)}, 16
        v_subrev_u32 {v(aIB)}, {s(sBN)}, {v(aIBc)}
        s_cmp_lt_i32 {s(sT1)}, {s(sBN)}
        s_cbranch_scc1 K2_s0_{u}
        s_add_u32 {s(sT1)}, {s(sBN)}, 16
        s_lshl_b32 {s(sT1)}, {s(sT1)}, 16
        v_cmp_gt_u32 vcc, {s(sT1)}, {v(REC)}
        s_bfm_b64 {s(sM,2)}, {s(sT0)}, 0
        s_and_b32 {s(sM)}, {s(sM)}, vcc_lo
        s_bcnt1_i32_b32 {s(sT0)}, {s(sM)}""")
        e.label(f"K2_s0_{u}")
        e(f"""s_bfm_b64 {s(sM,2)}, {s(sT0)}, 0
        s_lshl_b32 {s(sT0)}, {s(sT0)}, 3
        s_mov_b32 {s(sM+1)}, {s(sM)}
        s_add_u32 {s(sP8)}, {s(sP8)}, {s(sT0)}
        v_add_u32_sdwa {v(aIM)}, {v(aIB)}, {v(REC)} dst_sel:DWORD dst_unused:UNUSED_PAD src0_sel:DWORD src1_sel:WORD_1
        v_add_u32 {v(aLP)}, {s(sT0)}, {v(aLP)}
        v_add_u32 {v(aLQ)}, {s(sT0)}, {v(aLQ)}""")

    def DMA(half):
        for j in range(4):
            e(f"s_add_u32 m0, {s(sSTG)}, {1024*j}")
            e("s_nop 0")
            e(f"buffer_load_dwordx4 {v(IDX+2*j,2)}, {s(rBT,4)}, {s(s128) if half else 0} idxen offen lds")

    def RD():
        for k in range(4):
            e(f"ds_read_b128 {v(BR+4*k,4)}, {v(aBR+k)}")

    def AOP(tt):
        for u in range(2):
            e(f"ds_read_b64_tr_b16 {v(AO+2*u,2)}, {v(aAO)} offset:{tt*PLANE + 256*u}")

    def S1():
        e(f"""v_sub_f32 {v(PDV)}, {v(PDV)}, {v(PSV)}
        v_sub_f32 {v(PDV+1)}, {v(PDV+1)}, {v(PSV+1)}
        v_cvt_pk_bf16_f32 {v(vD)}, {v(PDV)}, {v(PDV+1)}
        v_dot2_f32_bf16 {v(vP)}, {v(vD)}, {v(vD)}, 0
        s_mov_b64 exec, {s(sM,2)}
        ds_write_b16 {v(aIM)}, {v(vD)}
        ds_write_b16_d16_hi {v(aIM)}, {v(vD)} offset:16
        v_cvt_pk_bf16_f32 {v(REC)}, {v(vP)}, {v(vP)}
        ds_write_b64 {v(aXT)}, {v(REC,2)} offset:64
        s_mov_b32 exec_hi, 0
        ds_write_b16 {v(aIM)}, {v(vONE)}
        s_mov_b64 exec, -1""")

    def rebase_ao():
        e(f"v_mad_u32_u24 {v(aAO)}, {v(vH32)}, {s(sBN)}, {v(aAOc)}")

    def S3():
        for k in range(4):
            e(f"ds_read_b64_tr_b16 {v(S4+2*k,2)}, {v(aS4)} offset:{80*8*k}")
        e(f"""s_mov_b64 exec, {s(sM,2)}
        ds_write_b16 {v(aIM)}, {v(vZ)}
        ds_write_b16 {v(aIM)}, {v(vZ)} offset:16
        s_mov_b64 exec, -1""")

    def xm(k, tt):
        if k < 2:
            b = BR + 8 * (tt & 1) + 4 * k
            e(f"{MFMA} {v(X,16)}, {v(b,4)}, {v(ID+4*k,4)}, {v(X,16) if k else 0}")
        else:
            e(f"{MFMA} {v(X,16)}, {v(SO,4)}, {v(AO,4)}, {v(X,16)}")

    OLD, aF0, aF1, aF2 = MP, MP + 2, MP + 3, MP + 4

    def flush_pre(base):
        e(f"""s_mul_i32 {s(sT0)}, {s(base)}, 136
        s_mul_i32 {s(sT1)}, {s(sW)}, 272
        s_add_u32 {s(sT1)}, {s(sT1)}, {NB*272}
        s_cmp_eq_u32 {s(base)}, {s(sFN)}
        s_cselect_b32 {s(sT1)}, {s(sT1)}, {s(sT0)}
        v_add_u32 {v(aF0)}, {s(sT1)}, {v(aFMc)}
        v_add_u32 {v(aF1)}, {s(sT0)}, {v(aFMc)}
        s_mul_i32 {s(sT0)}, {s(base)}, 24
        ds_read_b64 {v(OLD,2)}, {v(aF0)}
        v_add_u32 {v(aF2)}, {s(sT0)}, {v(aFPc)}""")

    def flush(base):
        A = lambda tt, r: ACC + 16 * tt + r
        for tt in range(4):
            for k in range(6):
                if tt == 0:
                    e(f"v_pk_mul_f32 {v(A(0,4+2*k),2)}, {v(A(0,4+2*k),2)}, {v(WX,2)}")
                else:
                    e(f"v_pk_fma_f32 {v(A(0,4+2*k),2)}, {v(A(tt,4+2*k),2)}, {v(WX+2*tt,2)}, {v(A(0,4+2*k),2)}")
        e(f"""s_waitcnt lgkmcnt(0)
        s_mov_b32 exec_hi, 0""")
        for tt in range(4):
            e(f"v_dot2_f32_bf16 {v(A(tt,0))}, {v(OLD+tt//2)}, {s((sK0,sK1)[tt&1])}, {v(A(tt,0))}")
        e("s_mov_b32 exec_hi, -1")
        Q = lambda c, i: A(1, 4 * c + i)
        for c in range(1, 4):
            for i in range(2):
                e(f"v_add_f32_dpp {v(Q(c,i))}, {v(A(0,4*c+i))}, {v(A(0,4*c+i))} row_ror:8 row_mask:0xf bank_mask:0x3")
        for c in range(1, 4):
            for i in range(2):
                e(f"v_add_f32_dpp {v(Q(c,i))}, {v(A(0,4*c+2+i))}, {v(A(0,4*c+2+i))} row_ror:8 row_mask:0xf bank_mask:0xc")
        P = lambda i: A(2, 4 + 2 * i)
        for i in range(4):
            for tp in range(2):
                e(f"v_cvt_pk_bf16_f32 {v(P(i)+tp)}, {v(A(2*tp,i))}, {v(A(2*tp+1,i))}")
        for c in range(1, 4):
            e(f"v_add_f32_dpp {v(Q(c,2))}, {v(Q(c,0))}, {v(Q(c,0))} row_half_mirror row_mask:0xf bank_mask:0x5")
        for c in range(1, 4):
            e(f"v_add_f32_dpp {v(Q(c,2))}, {v(Q(c,1))}, {v(Q(c,1))} row_half_mirror row_mask:0xf bank_mask:0xa")
        for c in range(1, 4):
            e(f"v_cvt_f64_f32 {v(Q(c,0),2)}, {v(Q(c,2))}")
        for c in range(1, 4):
            e(f"ds_add_f64 {v(aF2)}, {v(Q(c,0),2)} offset:{16*(c-1)}")
        e(f"""s_sub_u32 {s(sT0)}, {s(sLN)}, {s(base)}
        s_mov_b32 exec_hi, 0
        ds_write_b64 {v(aF0)}, {v(P(0),2)}""")
        for i in range(4):
            if i:
                e(f"s_cmp_ge_u32 {s(sT0)}, {2*i}")
                e("s_cselect_b32 exec_lo, -1, 0")
            else:
                e("s_mov_b32 exec_lo, 0")
            e(f"""s_cmp_ge_u32 {s(sT0)}, {8+2*i}
            s_cselect_b32 exec_hi, -1, 0
            ds_write_b64 {v(aF1)}, {v(P(i),2)} offset:{272*i}""")
        e("s_mov_b64 exec, -1")

    def wh_loads():
        e(f"""s_and_b32 {s(sT0)}, {s(sW)}, 3
        s_lshl_b32 {s(sT0)}, {s(sT0)}, 11
        v_lshlrev_b32 {v(IDX)}, 4, {v(vL)}
        v_add_u32 {v(IDX+2)}, 65536, {v(IDX)}
        v_add_u32 {v(IDX+4)}, {65536+4096}, {v(IDX)}
        v_add_u32 {v(IDX)}, 32768, {v(IDX)}
        v_xor_b32 {v(IDX)}, {s(sT0)}, {v(IDX)}""")
        for k in range(4):
            if k:
                e(f"v_xor_b32 {v(IDX+6)}, {2048*k}, {v(IDX)}")
            a = IDX + 6 if k else IDX
            e(f"global_load_dwordx4 {v(WH1+8*k,4)}, {v(a)}, {s(sWF,2)}")
            e(f"global_load_dwordx4 {v(WH1+8*k+4,4)}, {v(a)}, {s(sWF,2)} offset:1024")
        for k in range(8):
            e(f"global_load_dwordx4 {v(WH2+4*k,4)}, {v(IDX+2+2*(k//4))}, {s(sWF,2)} offset:{1024*(k%4)}")

    def unit(tt, nxt, tag):
        e(f"v_exp_f32 {v(T)}, {v(X)}")
        e("s_setprio 1")
        for i in range(1, 8):
            e(f"v_exp_f32 {v(T+i)}, {v(X+i)}")
        e("s_setprio 2")
        for i in range(8, 16):
            e(f"v_exp_f32 {v(T+i)}, {v(X+i)}")
        if tt == 0:
            e(f"""s_cmp_eq_u32 {s(sBP)}, {s(sBC)}
            s_cbranch_scc1 K2_nofl_{tag}
            s_cmp_lt_i32 {s(sBP)}, 0
            s_cbranch_scc1 K2_nofl_{tag}""")
            flush(sBP)
            e.label(f"K2_nofl_{tag}")
        for i in range(8):
            e(f"v_pk_fma_f32 {v(T+2*i,2)}, {v(T+2*i,2)}, {s(sC,2)}, {s(sC,2)}")
        for i in range(16):
            e(f"v_rcp_f32 {v(T+i)}, {v(T+i)}")
        for i in range(8):
            e(f"v_pk_mul_f32 {v(T+2*i,2)}, {v(T+2*i,2)}, {v(X+2*i,2)}")
        dox = tt < 3 or nxt
        e("s_waitcnt lgkmcnt(0)")
        if dox:
            xm(0, tt + 1)
        for i in range(8):
            e(f"v_cvt_pk_bf16_f32 {v(MP+i)}, {v(T+2*i)}, {v(T+2*i+1)}")
        e("s_setprio 3")
        if dox:
            xm(1, tt + 1)
            xm(2, tt + 1)
        a = ACC + 16 * tt
        e(f"""s_cmp_eq_u32 {s(sBP)}, {s(sBC)}
        s_cbranch_scc1 K2_acc_{tag}{tt}
        {MFMA} {v(a,16)}, {v(S4,4)}, {v(MP,4)}, 0
        s_branch K2_acd_{tag}{tt}""")
        e.label(f"K2_acc_{tag}{tt}")
        e(f"{MFMA} {v(a,16)}, {v(S4,4)}, {v(MP,4)}, {v(a,16)}")
        e.label(f"K2_acd_{tag}{tt}")
        e(f"{MFMA} {v(a,16)}, {v(S4+4,4)}, {v(MP+4,4)}, {v(a,16)}")

    def rotate_and_s0(pre):
        e(f"""s_mov_b32 {s(sBP)}, {s(sBC)}
        s_mov_b32 {s(sBC)}, {s(sBN)}""")
        if pre:
            e(f"""s_cmp_eq_u32 {s(sBP)}, {s(sBC)}
            s_cbranch_scc1 K2_nopre""")
            flush_pre(sBP)
            e.label("K2_nopre")
        e(f"""s_cmp_ge_u32 {s(sP8)}, {s(sEnd8)}
        s_cbranch_scc1 K2_last""")
        S0()

    e("s_setprio 3")
    e(f"""s_add_u32 {s(sT0)}, {s(sEnd8)}, {LIST - 6}
    v_mov_b32 {v(vD)}, {s(sT0)}
    ds_read_u16 {v(vD)}, {v(vD)}""")
    S0()
    e("s_waitcnt lgkmcnt(0)")
    DMA(0)
    e(f"""v_readfirstlane_b32 {s(sLN)}, {v(vD)}
    s_mov_b32 {s(sFN)}, {s(sBN)}
    s_cmp_lg_u32 {s(sLN)}, {s(sFN)}
    s_cbranch_scc1 K2_nohub
    ds_write_b32 {v(vZ)}, {v(vONE)} offset:{FLAG+4}""")
    e.label("K2_nohub")
    rebase_ao()
    AOP(0)
    e("s_waitcnt vmcnt(4)")
    S1()
    e(f"ds_read_b128 {v(SO,4)}, {v(aSO)}")
    e("s_waitcnt vmcnt(0)")
    RD()
    e("s_waitcnt lgkmcnt(0)")
    DMA(1)
    xm(0, 0); xm(1, 0); xm(2, 0)
    AOP(1)
    S3()
    prof("fill")
    rotate_and_s0(False)
    e(".p2align 6")
    e.label("K2_loop")
    e("s_setprio 0")
    unit(0, True, "a")
    e("s_waitcnt vmcnt(1)")
    RD()
    AOP(2)
    e("s_waitcnt lgkmcnt(2)")
    DMA(0)
    e("s_setprio 0")
    unit(1, True, "a")
    AOP(3)
    e("s_waitcnt vmcnt(4)")
    S1()
    e("s_setprio 0")
    unit(2, True, "a")
    e("s_waitcnt vmcnt(0)")
    RD()
    rebase_ao()
    AOP(0)
    e(f"ds_read_b128 {v(SO,4)}, {v(aSO)}")
    e("s_waitcnt lgkmcnt(3)")
    DMA(1)
    e("s_setprio 0")
    unit(3, True, "a")
    AOP(1)
    S3()
    rotate_and_s0(True)
    e("s_branch K2_loop")
    e.label("K2_last")
    prof("last")
    e("s_setprio 0")
    unit(0, False, "b")
    e("s_waitcnt vmcnt(0)")
    RD()
    AOP(2)
    wh_loads()
    e("s_setprio 0")
    unit(1, False, "b")
    AOP(3)
    e("s_nop 4")
    e("s_setprio 0")
    unit(2, False, "b")
    e("s_nop 6")
    e("s_setprio 0")
    unit(3, False, "b")
    flush_pre(sBC)
    e("s_setprio 0")
    flush(sBC)
    e("s_branch K2_post")
    e.label("K2_notiles")
    e(f"s_movk_i32 {s(sFN)}, -1")
    wh_loads()
    e.label("K2_post")
    prof("main")
    YA, YB, RA, RB = ACC, ACC + 16, ACC + 32, ACC + 48
    aH = IDX
    h_addr(aH, IDX + 2, True)
    h_frags(aH, IDX + 2)
    aM = IDX + 4
    e(f"""v_and_b32 {v(aM)}, 31, {v(vL)}
    v_mul_u32_u24 {v(aM)}, 272, {v(aM)}
    v_lshl_add_u32 {v(aM)}, {v(G+1)}, 1, {v(aM)}
    s_lshr_b32 {s(sT0)}, {s(sW)}, 2
    s_mul_i32 {s(sT0)}, {s(sT0)}, {64*272}
    s_add_u32 {s(sT0)}, {s(sT0)}, {MT}
    v_add_u32 {v(aM)}, {s(sT0)}, {v(aM)}
    s_waitcnt vmcnt(0) lgkmcnt(0)
    s_cmp_ge_u32 {s(sW)}, 4
    s_cbranch_scc1 K2_e1""")

    def gemm(W, first, small):
        for k in range(8):
            if not first:
                e(f"s_waitcnt lgkmcnt({14-2*k})")
            e(f"{MFMA} {v(YA,16)}, {v(W+4*k,4)}, {v(HF0+4*k,4)}, {v(YA,16) if (k or not first) else 0}")
            if small:
                e(f"{MFMA} {v(YB,16)}, {v(HF1+4*k,4)}, {v(W+4*k,4)}, {v(YB,16) if (k or not first) else 0}")
            else:
                e(f"{MFMA} {v(YB,16)}, {v(W+4*k,4)}, {v(HF1+4*k,4)}, {v(YB,16) if (k or not first) else 0}")
        if first:
            for k in range(2):
                e(f"{MFMA} {v(RA,16)}, {v(ID+4*k,4)}, {v(HF0+4*k,4)}, {v(RA,16) if k else 0}")
                if small:
                    e(f"{MFMA} {v(RB,16)}, {v(HF1+4*k,4)}, {v(ID+4*k,4)}, {v(RB,16) if k else 0}")
                else:
                    e(f"{MFMA} {v(RB,16)}, {v(ID+4*k,4)}, {v(HF1+4*k,4)}, {v(RB,16) if k else 0}")

    gemm(WH1, True, False)
    e("s_branch K2_e2")
    e.label("K2_e1")
    gemm(WH1, True, True)
    e.label("K2_e2")
    e("s_barrier")
    prof("bar4")
    e(f"""s_cmp_lt_i32 {s(sFN)}, 0
    s_cbranch_scc1 K2_fx2
    s_mul_i32 {s(sT0)}, {s(sFN)}, 136
    s_add_u32 {s(sT0)}, {s(sT0)}, {MT}
    s_mul_i32 {s(sT1)}, {s(sW)}, 272
    s_add_u32 {s(sT1)}, {s(sT1)}, {MT + NB*272}
    v_lshl_add_u32 {v(MP)}, {v(vL)}, 2, {s(sT0)}
    v_lshl_add_u32 {v(MP+1)}, {v(vL)}, 2, {s(sT1)}
    ds_read_b32 {v(MP+4)}, {v(vZ)} offset:{FLAG+4}
    ds_read_b32 {v(MP+2)}, {v(MP)}
    ds_read_b32 {v(MP+3)}, {v(MP+1)}
    s_waitcnt lgkmcnt(0)
    v_readfirstlane_b32 {s(sT0)}, {v(MP+4)}
    v_lshlrev_b32 {v(MP+5)}, 16, {v(MP+2)}
    v_and_b32 {v(MP+6)}, 0xffff0000, {v(MP+2)}
    s_cmp_eq_u32 {s(sT0)}, 0
    s_cbranch_scc1 K2_fx1
    ds_pk_add_bf16 {v(MP)}, {v(MP+3)}
    s_branch K2_fx2""")
    e.label("K2_fx1")
    e(f"""v_dot2_f32_bf16 {v(MP+5)}, {v(MP+3)}, {s(sK0)}, {v(MP+5)}
    v_dot2_f32_bf16 {v(MP+6)}, {v(MP+3)}, {s(sK1)}, {v(MP+6)}
    s_nop 2
    v_cvt_pk_bf16_f32 {v(MP+5)}, {v(MP+5)}, {v(MP+6)}
    ds_write_b32 {v(MP)}, {v(MP+5)}""")
    e.label("K2_fx2")
    e("""s_waitcnt lgkmcnt(0)
    s_barrier""")
    e(f"""s_cmp_eq_u32 {s(sMore)}, 0
    s_cbranch_scc1 K2_e3
    s_add_u32 {s(sOff)}, {s(sOff)}, {s(sLim)}
    s_nop 7
    s_branch K2_round""")
    e.label("K2_e3")
    for k in range(8):
        e(f"ds_read_b128 {v(HF0+4*k,4)}, {v(aM)} offset:{32*k}")
        e(f"ds_read_b128 {v(HF1+4*k,4)}, {v(aM)} offset:{32*k + 32*272}")
    rOUT = rH
    e(f"s_mov_b32 {s(sM)}, 1.0")
    e(f"s_mov_b32 {s(sM+1)}, 1.0")
    srd(e, rOUT, s(pOUT), s(pOUT + 1), N * 256)
    aRD, aST = IDX + 2, IDX + 6
    e(f"""v_lshrrev_b32 {v(aST)}, 2, {v(vL)}
    v_and_b32 {v(vD)}, 3, {v(vL)}
    v_lshlrev_b32 {v(vD)}, 4, {v(vD)}
    s_mul_i32 {s(sT1)}, {s(sW)}, 2560
    s_add_u32 {s(sT1)}, {s(sT1)}, {IMG}
    v_mul_u32_u24 {v(aRD)}, 80, {v(aST)}
    v_add3_u32 {v(aRD)}, {v(aRD)}, {v(vD)}, {s(sT1)}
    s_lshr_b32 {s(sT0)}, {s(sW)}, 2
    s_lshl_b32 {s(sT0)}, {s(sT0)}, 6
    s_add_u32 {s(sT0)}, {s(sT0)}, {s(sNB)}
    s_lshl_b32 {s(sT0)}, {s(sT0)}, 8
    s_and_b32 {s(sT1)}, {s(sW)}, 3
    s_lshl_b32 {s(sT1)}, {s(sT1)}, 6
    s_add_u32 {s(sT2)}, {s(sT0)}, {s(sT1)}
    v_lshl_add_u32 {v(aST)}, {v(aST)}, 8, {v(vD)}
    v_add_u32 {v(aST)}, {s(sT2)}, {v(aST)}
    s_cmp_ge_u32 {s(sW)}, 4
    s_cbranch_scc1 K2_e4""")

    def silu_out(Y, R, n):
        for i in range(n // 2):
            e(f"v_pk_mul_f32 {v(T+2*i,2)}, {v(Y+2*i,2)}, {s(sC,2)}")
        for i in range(n):
            e(f"v_exp_f32 {v(T+i)}, {v(T+i)}")
        if n == 2:
            e("s_nop 0")
        for i in range(n // 2):
            e(f"v_pk_add_f32 {v(T+2*i,2)}, {v(T+2*i,2)}, {s(sM,2)}")
        for i in range(n):
            e(f"v_rcp_f32 {v(T+i)}, {v(T+i)}")
        if n == 2:
            e("s_nop 0")
        for i in range(n // 2):
            e(f"v_pk_fma_f32 {v(T+2*i,2)}, {v(T+2*i,2)}, {v(Y+2*i,2)}, {v(R+2*i,2)}")
        for i in range(n // 2):
            e(f"v_cvt_pk_bf16_f32 {v(X+i)}, {v(T+2*i)}, {v(T+2*i+1)}")

    def out_tile(Y, R, rowoff, d):
        silu_out(Y, R, 16)
        for j in range(4):
            e(f"ds_write_b64 {v(aXT)}, {v(X+2*j,2)} offset:{16*j}")
        e(f"ds_read_b128 {v(d,4)}, {v(aRD)}")
        e(f"ds_read_b128 {v(d+4,4)}, {v(aRD)} offset:{16*80}")
        e(f"v_add_u32 {v(vD)}, {rowoff*256}, {v(aST)}")
        e(f"v_add_u32 {v(vP)}, {rowoff*256+4096}, {v(aST)}")
        e("s_waitcnt lgkmcnt(1)")
        e(f"buffer_store_dwordx4 {v(d,4)}, {v(vD)}, {s(rOUT,4)}, 0 offen")
        e("s_waitcnt lgkmcnt(0)")
        e(f"buffer_store_dwordx4 {v(d+4,4)}, {v(vP)}, {s(rOUT,4)}, 0 offen")

    gemm(WH2, False, False)
    e("s_nop 10")
    out_tile(YA, RA, 0, BR)
    out_tile(YB, RB, 32, BR + 8)
    e("s_branch K2_e5")
    e.label("K2_e4")
    gemm(WH2, False, True)
    e("s_nop 10")
    out_tile(YA, RA, 0, BR)
    silu_out(YB, RB, 2)
    e(f"""v_lshl_add_u32 {v(vD)}, {v(vL)}, 1, {s(sT2)}
    v_add_u32 {v(vD)}, {32*256}, {v(vD)}
    s_mov_b32 exec_hi, 0
    buffer_store_short {v(X)}, {v(vD)}, {s(rOUT,4)}, 0 offen
    buffer_store_short_d16_hi {v(X)}, {v(vD)}, {s(rOUT,4)}, 0 offen offset:256
    s_mov_b64 exec, -1""")
    e.label("K2_e5")
    e(f"""s_sub_u32 {s(sT0)}, {N}, {s(sNB)}
    s_min_u32 {s(sT0)}, {s(sT0)}, {NB}
    s_mul_i32 {s(sT0)}, {s(sT0)}, 3
    v_lshl_add_u32 {v(T)}, {s(sW)}, 6, {v(vL)}
    v_subrev_u32 {v(T)}, {512 - 3*NB}, {v(T)}
    v_cmp_gt_u32 vcc, {s(sT0)}, {v(T)}
    s_and_b64 exec, exec, vcc
    s_cbranch_execz K2_fin
    v_mul_u32_u24 {v(T+1)}, 0x5556, {v(T)}
    v_lshrrev_b32 {v(T+1)}, 16, {v(T+1)}
    v_add_u32 {v(T+1)}, {v(T+1)}, {v(T)}
    v_lshlrev_b32 {v(T+1)}, 2, {v(T+1)}
    v_add_u32 {v(T+2)}, {PD}, {v(T+1)}
    v_lshlrev_b32 {v(T+1)}, 4, {v(T)}
    v_add_u32 {v(T+1)}, {PACC}, {v(T+1)}
    ds_read_b32 {v(T+2)}, {v(T+2)} offset:4
    ds_read_b128 {v(T+4,4)}, {v(T+1)}
    s_mul_i32 {s(sT0)}, {s(sNB)}, 6
    s_add_u32 {s(sT0)}, {s(sT0)}, {N*256}
    v_lshl_add_u32 {v(T)}, {v(T)}, 1, {s(sT0)}
    s_waitcnt lgkmcnt(0)
    v_add_f64 {v(T+4,2)}, {v(T+4,2)}, {v(T+6,2)}
    v_cvt_f32_f64 {v(T+1)}, {v(T+4,2)}
    v_add_f32 {v(T+1)}, {v(T+1)}, {v(T+2)}
    v_cvt_pk_bf16_f32 {v(T+1)}, {v(T+1)}, {v(T+1)}
    global_store_short {v(T)}, {v(T+1)}, {s(pOUT,2)}""")
    e.label("K2_fin")
    if OPT["prof"]:
        e("s_mov_b64 exec, -1")
        prof("stores")
        e("s_waitcnt vmcnt(0)")
        prof("drained")
        prof.store(pWS, sW, 1, T + 4)
    if OPT["spin"]:
        prof.spin(pWS, sW, T + 8, True)
    e.label("K2_end")
    e("s_endpgm")
    return e, lds, nvgpr, prof.names


HEADER = """; EGNN layer (N=25000 nodes, E=400000 edges, D=128), bf16 in / bf16 out.  Generated by gen/gen.py.
"""


def kd(name, nv):
    return f""".amdhsa_kernel {name}
  .amdhsa_next_free_vgpr {nv}
  .amdhsa_next_free_sgpr 102
  .amdhsa_accum_offset {(nv + 3) // 4 * 4}
  .amdhsa_group_segment_fixed_size 0
  .amdhsa_kernarg_size 88
  .amdhsa_user_sgpr_count 2
  .amdhsa_user_sgpr_kernarg_segment_ptr 1
  .amdhsa_system_sgpr_workgroup_id_x 1
.end_amdhsa_kernel
"""


def main():
    a, lds1, nv1, pn1 = k1()
    b, lds2, nv2, pn2 = k2()
    for name, x in (("k1", a), ("k2", b)):
        for p in check_hazards(x.lines):
            print("HAZARD", name, p, file=sys.stderr)
    for x in (a, b):
        x.lines = [ln + " sc1" if ln.startswith(("global_store", "buffer_store")) else ln for ln in x.lines]
    out = HEADER
    out += f"; @launch kernel=egnn_prep_kernel grid=({NWG},1,1) block=(512,1,1) lds={lds1}\n"
    out += f"; @launch kernel=egnn_main_kernel grid=({NWG},1,1) block=(512,1,1) lds={lds2}\n"
    if OPT["prof"]:
        out += f"; prof0 {' '.join(pn1)}\n"
    out += '.amdgcn_target "amdgcn-amd-amdhsa--gfx950"\n.text\n'
    for name, x in (("egnn_prep_kernel", a), ("egnn_main_kernel", b)):
        out += f".globl {name}\n.p2align 8\n.type {name},@function\n" + x.text()
    out += '.section .rodata,"a"\n.p2align 6\n' + kd("egnn_prep_kernel", nv1) + ".p2align 6\n" + kd("egnn_main_kernel", nv2)
    open(sys.argv[1], "w").write(out)
    print(f"lds {lds1} {lds2}  vgpr {nv1} {nv2}", file=sys.stderr)


main()
```

```python
import sys, struct
from asmlib import Asm, Alloc, v, s, check_hazards

N, E, NB, CH, NWG = 25000, 400000, 98, 1568, 256
WS_BT, WS_REC, WS_TAB, WS_RDY, WS_PS, WS_WF, WS_PROF = 0, 0x640000, 0x980000, 0x9C0000, 0xA00000, 0xA80000, 0x1000000
NEG_LOG2E = struct.unpack("<I", struct.pack("<f", -1.4426950408889634))[0]
MFMA = "v_mfma_f32_32x32x16_bf16"
NAME = "standalone__cheap_equivariant_egnn__graph_kernel"
SPIN_MAX = 20000

OPT = dict(prof=0, spin="", wg0=0)
for a in sys.argv[2:]:
    k, x = a.split("=")
    OPT[k] = x if k == "spin" else int(x, 0)


def srd(e, d, lo, hi, nrec, stride=0):
    e(f"s_mov_b32 {s(d)}, {lo}")
    if stride:
        e(f"s_or_b32 {s(d+1)}, {hi}, {hex(stride << 16)}")
    else:
        e(f"s_mov_b32 {s(d+1)}, {hi}")
    e(f"s_mov_b32 {s(d+2)}, {nrec}")
    e(f"s_mov_b32 {s(d+3)}, 0x20000")


def scan64(e, r):
    for m in ("row_shr:1 row_mask:0xf", "row_shr:2 row_mask:0xf", "row_shr:4 row_mask:0xf", "row_shr:8 row_mask:0xf",
              "row_bcast:15 row_mask:0xa", "row_bcast:31 row_mask:0xc"):
        e("s_nop 1")
        e(f"v_add_u32_dpp {v(r)}, {v(r)}, {v(r)} {m} bank_mask:0xf")


class Prof:
    def __init__(self, e, sbase, nreg):
        self.e, self.sb, self.n, self.names = e, sbase, nreg - 3, []

    def __call__(self, name):
        e, sb = self.e, self.sb
        if OPT["spin"]:
            if name == OPT["spin"]:
                e(f"""s_memrealtime {s(sb,2)}
                s_waitcnt lgkmcnt(0)
                s_mov_b32 {s(sb+2)}, {s(sb)}""")
            return
        if not OPT["prof"]:
            return
        i = len(self.names)
        assert i < 2 * self.n
        self.names.append(name)
        if i == 0:
            e(f"""s_memrealtime {s(sb,2)}
            s_waitcnt lgkmcnt(0)
            s_mov_b32 {s(sb+2)}, {s(sb)}""")
        d = sb + 3 + i // 2
        e(f"""s_memtime {s(sb,2)}
        s_waitcnt lgkmcnt(0)
        s_lshr_b32 {s(sb)}, {s(sb)}, 2""")
        if i & 1:
            e(f"s_pack_ll_b32_b16 {s(d)}, {s(d)}, {s(sb)}")
        else:
            e(f"s_pack_lh_b32_b16 {s(d)}, {s(sb)}, {s(d)}")

    def finish(self, ws, sW, tmp):
        e, sb = self.e, self.sb
        if not (OPT["prof"] or OPT["spin"]):
            return
        e("s_mov_b64 exec, -1")
        self("stores")
        e("s_waitcnt vmcnt(0)")
        self("drained")
        if OPT["spin"]:
            if OPT["wg0"]:
                e(f"""s_or_b32 s3, {s(sW)}, s2
                s_cmp_lg_u32 s3, 0
                s_cbranch_scc1 K_end""")
            e(f"""s_add_u32 {s(sb+2)}, {s(sb+2)}, 6000
            s_mov_b32 s3, 0""")
            e.label("K_spin")
            e(f"""s_memrealtime {s(sb,2)}
            s_add_u32 s3, s3, 1
            s_cmp_gt_u32 s3, 100000
            s_cbranch_scc1 K_end
            s_waitcnt lgkmcnt(0)
            s_sub_u32 {s(sb)}, {s(sb)}, {s(sb+2)}
            s_cmp_lt_i32 {s(sb)}, 0
            s_cbranch_scc1 K_spin""")
            return
        e(f"""s_memrealtime {s(sb,2)}
        s_lshl_b32 s3, s2, 3
        s_add_u32 s3, s3, {s(sW)}
        s_lshl_b32 s3, s3, 7
        s_add_u32 s3, s3, {hex(WS_PROF)}
        s_waitcnt lgkmcnt(0)
        v_mov_b32 {v(tmp)}, s3""")
        for i in range((len(self.names) + 1) // 2):
            e(f"v_mov_b32 {v(tmp+1)}, {s(sb+3+i)}")
            e(f"global_store_dword {v(tmp)}, {v(tmp+1)}, {s(ws,2)} offset:{4*i}")
        e(f"""v_mov_b32 {v(tmp+1)}, {s(sb)}
        global_store_dword {v(tmp)}, {v(tmp+1)}, {s(ws,2)} offset:124
        v_mov_b32 {v(tmp+1)}, {s(sb+2)}
        global_store_dword {v(tmp)}, {v(tmp+1)}, {s(ws,2)} offset:120""")


def kernel():
    e = Asm()
    CAP = 2048
    L = Alloc(0, 160 * 1024)
    CNT = L(512, 16)
    BASE = L(512, 16)
    FLAG = L(16, 16)
    LIST = L((CAP + 64) * 8, 256)
    CNT1, BASE1, RECS = LIST, LIST + 1024, LIST + 2048
    HT = L(25600, 256)
    STG = L(8 * 4096, 256)
    PLANE = 106 * 64
    AT = L(4 * PLANE, 16)
    OUT = AT
    PD = L(NB * 16, 16)
    Z0 = L(0, 16)
    MT = L(106 * 272, 16)
    PACC = L(105 * 48, 16)
    IMG = L(8 * 2560, 16)
    Z1 = L(0, 16)
    L(Z0 + 7 * 8192 - Z1)
    lds = L.p
    WP, WQ = STG, Z0
    assert CNT1 + 1024 <= 4096 and NB * 272 <= 4 * PLANE and RECS + CH * 8 <= HT

    S = Alloc(4, 102)
    pH = S(2, 4); pPOS = S(2); pEA = S(2); pSRC = S(2); pDST = S(2); pWE = S(2); pWX = S(2); pWH = S(2)
    pOUT = S(2, 4); pDBG = S(2); pWS = S(2)
    sW = S(); sNB = S()
    rH = S(4, 4); rWS = S(4, 4); rBT = S(4, 4); rPSI = S(4, 4)
    rWE, rWH = rBT, rPSI
    sOff = S(); sLim = S(); sFirst = S(); sT0 = S(); sT1 = S(); sT2 = S()
    sC = S(2, 2); sM = S(2, 2); sEM = S(2, 2)
    sP8 = S(); sEnd8 = S(); sBN = S(); sBC = S(); sBP = S(); sSTG = S(); s128 = S(); sMore = S(); sFN = S(); sLN = S()
    sK0 = S(); sK1 = S()
    masks = [pPOS, pEA, pSRC, pDST, pWE, pWX, pWH, pH, pDBG, sEM] + [S(2, 2) for _ in range(2)]
    prof = Prof(e, S(18, 2), 18)

    V = Alloc(0, 256)
    ACC = V(64)
    X = V(16); T = V(16)
    BR = V(16); AO = V(4); SO = V(4); S4 = V(8)
    MP = V(8); ID = V(8)
    IDX = V(8); G = V(2); REC = V(2); PSV = V(2); PDV = V(2); WX = V(8)
    aBR = V(4); aSO = V(); aS4 = V(); aAO = V(); aAOc = V(); vH32 = V(); aLP = V(); aLQ = V()
    aIM = V(); aIB = V(); aIBc = V(); aXT = V(); aPDc = V(); vD = V(); vP = V(); vONE = V(); vZ = V()
    aFMc = V(); aFPc = V(); vL = V()
    Y = V(32, 2); WF = V(32, 2)
    nvgpr = V.p
    YA, YB = Y, Y + 16
    HF0, HF1 = X, BR
    vTID, vE, vH, aW = MP, MP + 1, MP + 2, MP + 3
    t = ACC + 48
    vDST, vSRC, vEA, vCA, vRK, vREC, vTB = ACC + 4, ACC + 8, ACC + 12, ACC + 16, ACC + 20, ACC + 24, ACC + 32
    u = ACC + 36
    R0, CA, RK = ACC, ACC + 24, ACC + 36

    def bar(name):
        e("s_barrier")
        prof(name)

    def poll(tag, load, check, pre_issued=False):
        e(f"s_mov_b32 {s(sT2)}, 0")
        if pre_issued:
            e(f"s_branch K_pc_{tag}")
        e.label(f"K_pl_{tag}")
        e(load)
        e.label(f"K_pc_{tag}")
        e(f"""s_waitcnt vmcnt(0)
        {check}
        s_add_u32 {s(sT2)}, {s(sT2)}, 1
        s_cbranch_vccz K_pd_{tag}
        s_sleep 4
        s_cmp_lt_u32 {s(sT2)}, {SPIN_MAX}
        s_cbranch_scc1 K_pl_{tag}""")
        e.label(f"K_pd_{tag}")

    def w_dma(rs, row0, dst):
        e(f"""v_lshrrev_b32 {v(t)}, 4, {v(vTID)}
        v_lshlrev_b32 {v(t+1)}, 2, {v(t)}
        v_xor_b32 {v(t+1)}, {v(t+1)}, {v(vTID)}
        v_and_b32 {v(t+1)}, 15, {v(t+1)}
        v_lshlrev_b32 {v(t)}, 8, {v(t)}
        v_lshl_add_u32 {v(t)}, {v(t+1)}, 4, {v(t)}
        s_lshl_b32 {s(sT0)}, {s(sW)}, 10""")
        for k in range(4):
            e(f"""s_add_u32 m0, {s(sT0)}, {dst + 8192*k}
            v_add_u32 {v(t+1)}, {row0*256 + 8192*k}, {v(t)}
            buffer_load_dwordx4 {v(t+1)}, {s(rs,4)}, 0 offen lds""")

    def w_frags(src):
        e(f"v_add_u32 {v(t)}, {src}, {v(aW)}")
        for k in range(8):
            for q in range(2):
                e(f"ds_read_b64_tr_b16 {v(WF+4*k+2*q,2)}, {v(t)} offset:{(16*k+4*q)*256}")

    def h_addr(dst, tmp, rot):
        e(f"""v_and_b32 {v(tmp)}, 15, {v(vL)}
        v_lshrrev_b32 {v(dst)}, 5, {v(vL)}
        v_xor_b32 {v(tmp)}, {v(tmp)}, {v(dst)}
        v_lshlrev_b32 {v(tmp)}, 4, {v(tmp)}
        v_and_b32 {v(dst)}, 31, {v(vL)}
        v_lshl_add_u32 {v(dst)}, {v(dst)}, 8, {v(tmp)}
        s_lshr_b32 {s(sT0)}, {s(sW)}, 2
        s_lshl_b32 {s(sT0)}, {s(sT0)}, 14""")
        if rot:
            e(f"""s_and_b32 {s(sT1)}, {s(sW)}, 3
            s_lshl_b32 {s(sT1)}, {s(sT1)}, 6
            s_or_b32 {s(sT0)}, {s(sT0)}, {s(sT1)}""")
        e(f"v_xor_b32 {v(dst)}, {s(sT0)}, {v(dst)}")

    def h_frags(a, tmp, n):
        for k in range(n):
            if k:
                e(f"v_xor_b32 {v(tmp)}, {32*k}, {v(a)}")
            x = tmp if k else a
            e(f"ds_read_b128 {v(HF0+4*k,4)}, {v(x)} offset:{HT}")
            e(f"ds_read_b128 {v(HF1+4*k,4)}, {v(x)} offset:{HT+8192}")

    def gemm(A, B, W, n, trA, trB, first, waits):
        for k in range(n):
            if waits:
                e(f"s_waitcnt lgkmcnt({2*(n-1-k)})")
            for acc, hf, tr in ((A, HF0, trA), (B, HF1, trB)):
                x, y = (W + 4 * k, hf + 4 * k) if tr else (hf + 4 * k, W + 4 * k)
                e(f"{MFMA} {v(acc,16)}, {v(x,4)}, {v(y,4)}, {v(acc,16) if (k or not first) else 0}")

    e.label(NAME)
    e(f"""s_cmp_ge_u32 s2, {NWG}
    s_cbranch_scc1 K_end""")
    prof("entry")
    e(f"""s_load_dwordx16 {s(pH,16)}, s[0:1], 0
    s_load_dwordx4 {s(pOUT,4)}, s[0:1], 64
    s_load_dwordx2 {s(pWS,2)}, s[0:1], 80
    v_mov_b32 {v(vTID)}, v0
    v_and_b32 {v(vL)}, 63, v0
    v_lshrrev_b32 {v(t)}, 6, v0
    v_mov_b32 {v(t+2)}, 0
    v_readfirstlane_b32 {s(sW)}, {v(t)}
    v_mov_b32 {v(t+3)}, 0
    v_lshlrev_b32 {v(t+1)}, 3, v0
    ds_write_b64 {v(t+1)}, {v(t+2,2)}
    s_mul_i32 {s(sT0)}, s2, {CH}
    s_sub_u32 {s(sT1)}, {E}, {s(sT0)}
    s_lshr_b32 {s(sT1)}, {s(sT1)}, 2
    s_min_u32 {s(sT1)}, {s(sT1)}, {CH // 4}
    s_lshl_b32 {s(sT0)}, {s(sT0)}, 1
    v_add_u32 {v(t+1)}, {s(sT0)}, {v(t+1)}
    v_lshlrev_b32 {v(t)}, 1, {v(t+1)}
    s_mul_i32 {s(sNB)}, s2, {NB}
    v_cmp_gt_u32 {s(sEM,2)}, {s(sT1)}, {v(vTID)}
    v_lshrrev_b32 {v(t+4)}, 4, {v(vTID)}
    v_xor_b32 {v(t+5)}, {v(t+4)}, {v(vTID)}
    v_and_b32 {v(t+5)}, 15, {v(t+5)}
    v_add_u32 {v(t+4)}, {s(sNB)}, {v(t+4)}
    v_lshlrev_b32 {v(t+4)}, 8, {v(t+4)}
    v_lshl_add_u32 {v(t+4)}, {v(t+5)}, 4, {v(t+4)}
    v_mov_b32 {v(vZ)}, 0
    v_mov_b32 {v(vONE)}, 0x3f80
    s_mov_b64 exec, {s(sEM,2)}
    s_waitcnt lgkmcnt(0)
    s_cbranch_execz K_noedge
    global_load_dwordx4 {v(vDST,4)}, {v(t)}, {s(pDST,2)}
    global_load_dwordx4 {v(vSRC,4)}, {v(t)}, {s(pSRC,2)}
    global_load_dwordx2 {v(vEA,2)}, {v(t+1)}, {s(pEA,2)}""")
    e.label("K_noedge")
    e("s_mov_b64 exec, -1")
    bar("b1")
    srd(e, rH, s(pH), s(pH + 1), N * 256)
    e(f"""s_cmp_lg_u32 {s(sW)}, 7
    s_cbranch_scc1 K_side0""")
    for i in range(8):
        e(f"v_mov_b32 {v(u+i)}, 0")
    e(f"""s_cmp_ge_u32 s2, 32
    s_cbranch_scc1 K_noclr
    s_lshl_b32 {s(sT0)}, s2, 13
    s_add_u32 {s(sT0)}, {s(sT0)}, {hex(WS_TAB)}
    v_lshl_add_u32 {v(t)}, {v(vL)}, 4, {s(sT0)}
    v_add_u32 {v(t+1)}, 4096, {v(t)}
    s_lshl_b32 {s(sT0)}, s2, 9
    s_add_u32 {s(sT0)}, {s(sT0)}, {hex(WS_RDY)}
    v_lshl_add_u32 {v(t+2)}, {v(vL)}, 3, {s(sT0)}""")
    for k in range(8):
        e(f"global_store_dwordx4 {v(t+k//4)}, {v(u,4)}, {s(pWS,2)} offset:{1024*(k%4)}")
    e(f"global_store_dwordx2 {v(t+2)}, {v(u,2)}, {s(pWS,2)}")
    e.label("K_noclr")
    e(f"""s_add_u32 {s(sT0)}, {s(sNB)}, {NB}
    s_min_u32 {s(sT0)}, {s(sT0)}, {N}
    v_add_u32 {v(t)}, {s(sNB)}, {v(vL)}
    v_add_u32 {v(t+1)}, 64, {v(t)}
    v_mul_u32_u24 {v(t+2)}, 6, {v(t)}
    v_cmp_gt_u32 vcc, {s(sT0)}, {v(t)}
    v_cmp_gt_u32 {s(sM,2)}, {s(sT0)}, {v(t+1)}
    v_mov_b32 {v(vCA)}, 0
    v_mov_b32 {v(vRK)}, 0
    s_mov_b64 exec, vcc""")
    for i in range(3):
        e(f"global_load_ushort {v(vCA+1+i)}, {v(t+2)}, {s(pPOS,2)} offset:{2*i}")
    e(f"""s_mov_b64 exec, {s(sM,2)}
    s_cbranch_execz K_ps1""")
    for i in range(3):
        e(f"global_load_ushort {v(vRK+1+i)}, {v(t+2)}, {s(pPOS,2)} offset:{384+2*i}")
    e.label("K_ps1")
    e(f"""s_mov_b64 exec, -1
    s_lshr_b32 {s(sT0)}, s2, 5
    s_cmp_lg_u32 {s(sT0)}, 1
    s_cbranch_scc1 K_side0
    s_and_b32 {s(sT0)}, s2, 7
    s_lshl_b32 {s(sT0)}, {s(sT0)}, 10
    s_bfe_u32 {s(sT1)}, s2, {hex((2 << 16) | 3)}
    s_lshl_b32 {s(sT1)}, {s(sT1)}, 6
    s_add_u32 {s(sT0)}, {s(sT0)}, {s(sT1)}
    s_add_u32 {s(sT0)}, {s(sT0)}, {128*256}
    v_and_b32 {v(t)}, 31, {v(vL)}
    v_lshl_add_u32 {v(t)}, {v(t)}, 1, {s(sT0)}
    v_lshrrev_b32 {v(t+1)}, 5, {v(vL)}
    v_lshl_add_u32 {v(t)}, {v(t+1)}, 9, {v(t)}
    v_add_u32 {v(t+1)}, 8192, {v(t)}
    v_add_u32 {v(t+2)}, 16384, {v(t)}
    v_add_u32 {v(t+3)}, 24576, {v(t)}""")
    for j in range(8):
        e(f"global_load_ushort {v(vREC+j//2+4*(j&1))}, {v(t+(j&3))}, {s(pWH,2)} offset:{256*(j//4)}")
    e.label("K_side0")
    e(f"s_lshl_b32 {s(sT0)}, {s(sW)}, 10")
    for k in range(3):
        e(f"""s_add_u32 m0, {s(sT0)}, {HT + 8192*k}
        v_add_u32 {v(t+5)}, {8192*k}, {v(t+4)}
        buffer_load_dwordx4 {v(t+5)}, {s(rH,4)}, 0 offen lds""")
    e(f"""s_cmp_lg_u32 {s(sW)}, 0
    s_cbranch_scc1 K_no4
    s_mov_b32 m0, {HT + 8192*3}
    v_add_u32 {v(t+5)}, {8192*3}, {v(t+4)}
    buffer_load_dwordx4 {v(t+5)}, {s(rH,4)}, 0 offen lds""")
    e.label("K_no4")
    srd(e, rWE, s(pWE), s(pWE + 1), 258 * 256)
    srd(e, rWH, s(pWH), s(pWH + 1), 256 * 256)
    srd(e, rWS, s(pWS), s(pWS + 1), hex(WS_PROF))
    e(f"""s_mov_b32 {s(sOff)}, 0
    s_mov_b32 {s(sLim)}, {24*8}
    s_mov_b32 {s(sFirst)}, 1
    s_mov_b32 {s(sC)}, {hex(NEG_LOG2E)}
    s_mov_b32 {s(sC+1)}, {hex(NEG_LOG2E)}
    s_movk_i32 {s(s128)}, 128
    s_movk_i32 {s(sK0)}, 0x3f80
    s_mov_b32 {s(sK1)}, 0x3f800000""")
    e(f"""v_and_b32 {v(vE)}, 31, {v(vL)}
    v_lshrrev_b32 {v(vH)}, 5, {v(vL)}
    s_mul_i32 {s(sT1)}, {s(sW)}, 2560
    s_add_u32 {s(sT1)}, {s(sT1)}, {IMG}
    s_lshl_b32 {s(sSTG)}, {s(sW)}, 12
    s_add_u32 {s(sSTG)}, {s(sSTG)}, {STG}
    v_mul_u32_u24 {v(t+2)}, 80, {v(vE)}
    v_add_u32 {v(t+2)}, {s(sT1)}, {v(t+2)}
    v_lshl_add_u32 {v(aIBc)}, {v(vH)}, 5, {v(t+2)}
    v_lshl_add_u32 {v(aSO)}, {v(vH)}, 6, {v(t+2)}
    v_lshl_add_u32 {v(aXT)}, {v(vH)}, 3, {v(t+2)}
    v_lshlrev_b32 {v(G+1)}, 3, {v(vH)}
    v_add_u32 {v(aPDc)}, {PD}, {v(G+1)}
    v_bfe_u32 {v(t+2)}, {v(vL)}, 2, 2
    v_bfe_u32 {v(t+3)}, {v(vL)}, 4, 1
    v_and_b32 {v(t+4)}, 3, {v(vL)}
    v_lshlrev_b32 {v(t+4)}, 3, {v(t+4)}
    v_lshl_add_u32 {v(t+4)}, {v(t+3)}, 5, {v(t+4)}
    v_lshl_add_u32 {v(t+5)}, {v(vH)}, 2, {v(t+2)}
    v_mul_u32_u24 {v(t+6)}, 48, {v(t+5)}
    v_lshl_add_u32 {v(t+6)}, {v(t+3)}, 3, {v(t+6)}
    v_add_u32 {v(aFPc)}, {PACC}, {v(t+6)}
    v_mul_u32_u24 {v(t+5)}, 80, {v(t+5)}
    v_add3_u32 {v(aS4)}, {v(t+5)}, {v(t+4)}, {s(sT1)}
    v_mul_u32_u24 {v(t+5)}, {NB}, {v(vH)}
    v_add_u32 {v(t+5)}, {v(t+5)}, {v(t+2)}
    v_lshl_add_u32 {v(t+5)}, {v(t+5)}, 6, {v(t+4)}
    v_add_u32 {v(aAOc)}, {AT}, {v(t+5)}
    v_lshlrev_b32 {v(vH32)}, 5, {v(vH)}
    v_sub_u32 {v(vH32)}, 32, {v(vH32)}
    v_add_u32 {v(t+5)}, {v(G+1)}, {v(t+2)}
    v_lshl_add_u32 {v(aW)}, {v(t+5)}, 8, {v(t+4)}
    s_and_b32 {s(sT0)}, {s(sW)}, 3
    v_xor_b32 {v(t+2)}, {s(sT0)}, {v(t+2)}
    v_lshl_add_u32 {v(aW)}, {v(t+2)}, 6, {v(aW)}""")
    e(f"""v_bfe_u32 {v(t+2)}, {v(vL)}, 1, 3
    v_xor_b32 {v(t+2)}, {v(t+2)}, {v(vH)}
    v_lshlrev_b32 {v(t+2)}, 4, {v(t+2)}
    v_lshl_add_u32 {v(t+2)}, {v(vE)}, 7, {v(t+2)}
    v_add_u32 {v(aBR)}, {s(sSTG)}, {v(t+2)}""")
    for k in range(1, 4):
        e(f"v_xor_b32 {v(aBR+k)}, {32*k}, {v(aBR)}")
    e(f"""v_lshrrev_b32 {v(t+2)}, 4, {v(vL)}
    v_xor_b32 {v(t+2)}, {v(t+2)}, {v(vL)}
    v_and_b32 {v(t+2)}, 7, {v(t+2)}
    v_lshlrev_b32 {v(IDX+1)}, 4, {v(t+2)}
    v_xor_b32 {v(IDX+3)}, 64, {v(IDX+1)}
    v_mov_b32 {v(IDX+5)}, {v(IDX+1)}
    v_mov_b32 {v(IDX+7)}, {v(IDX+3)}
    v_mul_u32_u24 {v(t+2)}, {4*272}, {v(vH)}
    v_lshl_add_u32 {v(t+2)}, {v(vE)}, 3, {v(t+2)}
    v_add_u32 {v(aFMc)}, {MT}, {v(t+2)}""")
    e(f"""v_sub_u32 {v(t+2)}, {v(vE)}, {v(G+1)}
    v_and_b32 {v(t+3)}, 1, {v(vL)}
    v_lshlrev_b32 {v(t+3)}, 4, {v(t+3)}
    v_lshlrev_b32 {v(t+3)}, {v(t+3)}, {v(vONE)}
    v_ashrrev_i32 {v(t+2)}, 1, {v(t+2)}""")
    for k in range(8):
        e(f"""v_cmp_eq_u32 vcc, {8*(k//4) + k%4}, {v(t+2)}
        s_nop 1
        v_cndmask_b32 {v(ID+k)}, 0, {v(t+3)}, vcc""")
    e(f"""s_cmp_eq_u32 {s(sW)}, 7
    s_cbranch_scc1 K_side1
    s_mov_b64 exec, {s(sEM,2)}
    s_cbranch_execz K_rank1
    v_mov_b32 {v(t+8)}, 8
    s_movk_i32 {s(sT0)}, {-NB}
    s_waitcnt vmcnt(3)""")
    for i in range(4):
        e(f"""v_mul_u32_u24 {v(t+i)}, 21400, {v(vDST+i)}
        v_lshrrev_b32 {v(t+i)}, 21, {v(t+i)}
        v_lshlrev_b32 {v(vCA+i)}, 2, {v(t+i)}
        ds_add_rtn_u32 {v(vRK+i)}, {v(vCA+i)}, {v(t+8)} offset:{CNT1}""")
    for i in range(4):
        e(f"v_mad_i32_i24 {v(t+i)}, {v(t+i)}, {s(sT0)}, {v(vDST+i)}")
        e(f"v_lshl_or_b32 {v(vREC+2*i)}, {v(t+i)}, 17, {v(vSRC+i)}")
        if i & 1:
            e(f"v_lshrrev_b32 {v(t+4)}, 16, {v(vEA+i//2)}")
        else:
            e(f"v_and_b32 {v(t+4)}, 0xffff, {v(vEA+i//2)}")
        e(f"v_lshl_or_b32 {v(vREC+2*i+1)}, {v(t+i)}, 20, {v(t+4)}")
    e("s_branch K_rank1")
    e.label("K_side1")
    e(f"""s_waitcnt vmcnt(3)
    s_cmp_ge_u32 s2, 32
    s_cbranch_scc1 K_nogo
    s_lshl_b32 {s(sT0)}, s2, 2
    v_mov_b32 {v(t)}, {s(sT0)}
    s_mov_b64 exec, 1
    global_store_dword {v(t)}, {v(vONE)}, {s(pDBG,2)}
    s_mov_b64 exec, -1""")
    e.label("K_nogo")
    for i in (1, 2, 3, 5, 6, 7):
        e(f"v_lshlrev_b32 {v(vCA+i)}, 16, {v(vCA+i)}")
    e(f"""v_lshlrev_b32 {v(t)}, 4, {v(vL)}
    s_lshl_b32 {s(sT0)}, {s(sNB)}, 4
    s_add_u32 {s(sT0)}, {s(sT0)}, {hex(WS_PS)}
    v_add_u32 {v(t+1)}, {s(sT0)}, {v(t)}
    v_add_u32 {v(t+2)}, {PD}, {v(t)}
    global_store_dwordx4 {v(t+1)}, {v(vCA,4)}, {s(pWS,2)}
    ds_write_b128 {v(t+2)}, {v(vCA,4)}
    s_mov_b64 exec, {s(sM,2)}
    s_cbranch_execz K_ps2
    global_store_dwordx4 {v(t+1)}, {v(vRK,4)}, {s(pWS,2)} offset:1024
    ds_write_b128 {v(t+2)}, {v(vRK,4)} offset:1024""")
    e.label("K_ps2")
    e(f"""s_mov_b64 exec, -1
    s_lshr_b32 {s(sT0)}, s2, 5
    s_cmp_lg_u32 {s(sT0)}, 1
    s_cbranch_scc1 K_rank1""")
    for j in range(4):
        e(f"v_lshl_or_b32 {v(vREC+j)}, {v(vREC+4+j)}, 16, {v(vREC+j)}")
    e(f"""s_lshl_b32 {s(sT0)}, s2, 10
    s_add_u32 {s(sT0)}, {s(sT0)}, {hex(WS_WF - 32*1024)}
    v_add_u32 {v(t+1)}, {s(sT0)}, {v(t)}
    global_store_dwordx4 {v(t+1)}, {v(vREC,4)}, {s(pWS,2)}""")
    e.label("K_rank1")
    e(f"""s_mov_b64 exec, -1
    v_lshlrev_b32 {v(t+10)}, 4, {v(vL)}
    s_waitcnt lgkmcnt(0)""")
    bar("b2")
    c = t + 4
    e(f"ds_read_b128 {v(c,4)}, {v(t+10)} offset:{CNT1}")
    w_dma(rWE, 128, WP)
    e(f"""s_waitcnt lgkmcnt(0)
    v_add_u32 {v(t+12)}, {v(c)}, {v(c+1)}
    v_add3_u32 {v(t+11)}, {v(t+12)}, {v(c+2)}, {v(c+3)}
    v_mov_b32 {v(t+9)}, {v(t+11)}""")
    scan64(e, t + 9)
    e(f"""v_sub_u32 {v(t+12)}, {v(t+9)}, {v(t+11)}
    v_add_u32 {v(t+13)}, {v(t+12)}, {v(c)}
    v_add_u32 {v(t+14)}, {v(t+13)}, {v(c+1)}
    v_add_u32 {v(t+15)}, {v(t+14)}, {v(c+2)}
    ds_write_b128 {v(t+10)}, {v(t+12,4)} offset:{BASE1}
    s_mov_b64 exec, {s(sEM,2)}""")
    for i in range(4):
        e(f"ds_read_b32 {v(vCA+i)}, {v(vCA+i)} offset:{BASE1}")
    e("s_mov_b64 exec, -1")
    for i in range(4):
        e(f"v_lshl_or_b32 {v(vTB+i)}, {v(c+i)}, 16, {v(t+12+i)}")
        e(f"v_or_b32 {v(vTB+i)}, 0x80000000, {v(vTB+i)}")
    e(f"""s_mov_b64 exec, {s(sEM,2)}
    s_waitcnt lgkmcnt(0)""")
    for i in range(4):
        e(f"v_add_u32 {v(vCA+i)}, {v(vCA+i)}, {v(vRK+i)}")
        e(f"ds_write_b64 {v(vCA+i)}, {v(vREC+2*i,2)} offset:{RECS}")
    e(f"""s_mov_b64 exec, -1
    v_lshlrev_b32 {v(t+4)}, 4, {v(vTID)}
    s_mul_i32 {s(sT0)}, s2, {CH*8}
    s_add_u32 {s(sT0)}, {s(sT0)}, {hex(WS_REC)}
    v_add_u32 {v(t+5)}, {s(sT0)}, {v(t+4)}
    v_add_u32 {v(t+6)}, 8192, {v(t+5)}
    s_movk_i32 {s(sT0)}, {CH*8//16 - 512}
    v_cmp_gt_u32 vcc, {s(sT0)}, {v(vTID)}
    s_waitcnt lgkmcnt(0)""")
    bar("b3")
    e(f"""ds_read_b128 {v(ACC,4)}, {v(t+4)} offset:{RECS}
    ds_read_b128 {v(ACC+4,4)}, {v(t+4)} offset:{RECS+8192}
    s_waitcnt lgkmcnt(1)
    global_store_dwordx4 {v(t+5)}, {v(ACC,4)}, {s(pWS,2)}
    s_mov_b64 exec, vcc
    s_cbranch_execz K_rec1
    s_waitcnt lgkmcnt(0)
    global_store_dwordx4 {v(t+6)}, {v(ACC+4,4)}, {s(pWS,2)}""")
    e.label("K_rec1")
    e("s_mov_b64 exec, -1")
    w_dma(rWE, 0, WQ)
    e(f"v_lshlrev_b32 {v(t)}, 1, {v(vE)}")
    for k in range(4):
        e(f"global_load_ushort {v(WX+2*k)}, {v(t)}, {s(pWX,2)} offset:{64*k}")
    e(f"""v_and_b32 {v(t)}, 127, {v(vTID)}
    v_lshlrev_b32 {v(t)}, 1, {v(t)}
    v_add_u32 {v(t)}, {256*256}, {v(t)}
    global_load_ushort {v(PSV)}, {v(t)}, {s(pWE,2)}
    global_load_ushort {v(PSV+1)}, {v(t)}, {s(pWE,2)} offset:256""")
    aH, aO = t + 2, t + 4
    h_addr(aH, t + 3, False)
    e(f"""v_mul_u32_u24 {v(aO)}, 272, {v(vE)}
    s_lshr_b32 {s(sT0)}, {s(sW)}, 2
    s_mul_i32 {s(sT0)}, {s(sT0)}, {64*272}
    s_and_b32 {s(sT1)}, {s(sW)}, 3
    s_lshl_b32 {s(sT1)}, {s(sT1)}, 6
    s_add_u32 {s(sT0)}, {s(sT0)}, {s(sT1)}
    s_add_u32 {s(sT0)}, {s(sT0)}, {OUT}
    v_add3_u32 {v(aO)}, {v(aO)}, {v(G+1)}, {s(sT0)}
    s_waitcnt vmcnt(12) lgkmcnt(0)
    s_cmp_lt_u32 {s(sW)}, 5
    s_cbranch_scc1 K_w12
    s_waitcnt vmcnt(11)""")
    e.label("K_w12")
    bar("b3h")
    w_frags(WP)
    h_frags(aH, t + 3, 8)
    e(f"""v_lshlrev_b32 {v(u)}, 2, {v(vE)}
    s_cmp_lg_u32 {s(sW)}, 7
    s_cbranch_scc1 K_go1
    global_load_dword {v(u+1)}, {v(u)}, {s(pDBG,2)} sc1""")
    e.label("K_go1")
    gemm(YA, YB, WF, 8, True, True, True, True)
    e(f"""v_lshlrev_b32 {v(t+5)}, 4, {v(vTID)}
    v_lshrrev_b32 {v(t+6)}, 4, {v(vTID)}
    v_lshl_add_u32 {v(t+6)}, {v(t+6)}, 4, {v(t+5)}
    v_add_u32 {v(t+6)}, {OUT}, {v(t+6)}
    s_lshl_b32 {s(sT0)}, {s(sNB)}, 8
    v_add_u32 {v(t+8)}, {s(sT0)}, {v(t+5)}
    v_add_u32 {v(t+9)}, 8192, {v(t+8)}
    v_add_u32 {v(t+10)}, 16384, {v(t+8)}
    v_add_u32 {v(t+11)}, 24576, {v(t+8)}
    s_cmp_ge_u32 {s(sW)}, 4
    s_cselect_b32 {s(sM)}, 3, -1
    s_mov_b32 {s(sM+1)}, {s(sM)}""")
    for r in range(2):
        a = Y + 16 * r
        for k in range(8):
            e(f"v_pk_mul_f32 {v(a+2*k,2)}, {v(a+2*k,2)}, {s(sC,2)}")
        for k in range(8):
            e(f"v_cvt_pk_bf16_f32 {v(a+k)}, {v(a+2*k)}, {v(a+2*k+1)}")
        if r:
            e(f"s_mov_b64 exec, {s(sM,2)}")
        for j in range(4):
            e(f"ds_write_b64 {v(aO)}, {v(a+2*j,2)} offset:{r*32*272 + 16*j}")
    e(f"""s_mov_b64 exec, -1
    s_cmp_lg_u32 {s(sW)}, 7
    s_cbranch_scc1 K_go2""")
    poll("go", f"global_load_dword {v(u+1)}, {v(u)}, {s(pDBG,2)} sc1", f"v_cmp_eq_u32 vcc, 0, {v(u+1)}", True)
    e.label("K_go2")
    prof("bgemm")
    e("s_waitcnt vmcnt(0) lgkmcnt(0)")
    bar("b4")
    e(f"""s_cmp_lg_u32 {s(sW)}, 7
    s_cbranch_scc1 K_notab
    s_lshl_b32 {s(sT0)}, s2, 10
    s_add_u32 {s(sT0)}, {s(sT0)}, {hex(WS_TAB)}
    v_lshl_add_u32 {v(u)}, {v(vL)}, 4, {s(sT0)}
    global_store_dwordx4 {v(u)}, {v(vTB,4)}, {s(pWS,2)}""")
    e.label("K_notab")
    for k in range(4):
        e(f"ds_read_b128 {v(ACC+4*k,4)}, {v(t+6)} offset:{8704*k}")
    for k in range(3):
        e(f"s_waitcnt lgkmcnt({3-k})")
        e(f"global_store_dwordx4 {v(t+8+k)}, {v(ACC+4*k,4)}, {s(pWS,2)}")
    e(f"""s_waitcnt lgkmcnt(0)
    s_cmp_lg_u32 {s(sW)}, 0
    s_cbranch_scc1 K_bt1
    s_mov_b32 exec_hi, 0
    global_store_dwordx4 {v(t+11)}, {v(ACC+12,4)}, {s(pWS,2)}
    s_mov_b32 exec_hi, -1""")
    e.label("K_bt1")
    w_frags(WQ)
    w_dma(rWH, 0, WP)
    gemm(YA, YB, WF, 8, False, False, True, True)
    aA = t + 5
    e(f"""s_and_b32 {s(sT1)}, {s(sW)}, 3
    s_mul_i32 {s(sT1)}, {s(sT1)}, {PLANE}
    s_lshr_b32 {s(sT0)}, {s(sW)}, 2
    s_lshl_b32 {s(sT0)}, {s(sT0)}, 12
    s_add_u32 {s(sT1)}, {s(sT1)}, {s(sT0)}
    s_add_u32 {s(sT1)}, {s(sT1)}, {AT}
    v_lshlrev_b32 {v(aA)}, 1, {v(vE)}
    v_lshl_add_u32 {v(aA)}, {v(vH)}, 8, {v(aA)}
    v_add_u32 {v(aA)}, {s(sT1)}, {v(aA)}""")
    for k in range(4):
        e(f"v_lshlrev_b32 {v(WX+2*k+1)}, 16, {v(WX+2*k)}")
        e(f"v_lshlrev_b32 {v(WX+2*k)}, 16, {v(WX+2*k)}")
    bar("b5")
    e(f"""s_cmp_lt_u32 {s(sW)}, 6
    s_cbranch_scc1 K_j4
    v_lshlrev_b32 {v(PSV)}, 16, {v(PSV)}
    v_lshlrev_b32 {v(PSV+1)}, 16, {v(PSV+1)}
    v_mul_f32 {v(PSV)}, {s(sC)}, {v(PSV)}
    v_mul_f32 {v(PSV+1)}, {s(sC)}, {v(PSV+1)}
    v_cvt_pk_bf16_f32 {v(PDV)}, {v(PSV)}, {v(PSV+1)}
    v_lshlrev_b32 {v(REC)}, 16, {v(PDV)}
    v_and_b32 {v(REC+1)}, 0xffff0000, {v(PDV)}
    v_sub_f32 {v(PSV)}, {v(PSV)}, {v(REC)}
    v_sub_f32 {v(PSV+1)}, {v(PSV+1)}, {v(REC+1)}
    v_cvt_pk_bf16_f32 {v(PDV+1)}, {v(PSV)}, {v(PSV+1)}
    v_bfe_u32 {v(REC)}, {v(vTID)}, 5, 2
    v_mul_u32_u24 {v(REC)}, {PLANE}, {v(REC)}
    v_lshl_add_u32 {v(REC)}, {v(vE)}, 1, {v(REC)}
    v_add_u32 {v(REC)}, {AT + NB*64}, {v(REC)}
    ds_write_b16 {v(REC)}, {v(PDV)}
    ds_write_b16 {v(REC)}, {v(PDV+1)} offset:64
    ds_write_b16_d16_hi {v(REC)}, {v(PDV)} offset:128
    ds_write_b16 {v(REC)}, {v(vZ)} offset:192
    ds_write_b16 {v(REC)}, {v(PDV)} offset:256
    ds_write_b16 {v(REC)}, {v(PDV+1)} offset:320
    ds_write_b16_d16_hi {v(REC)}, {v(PDV+1)} offset:384
    ds_write_b16 {v(REC)}, {v(vZ)} offset:448""")
    e.label("K_j4")

    def a_out(r, npairs):
        a = Y + 16 * r
        for k in range(npairs):
            e(f"v_pk_mul_f32 {v(a+2*k,2)}, {v(a+2*k,2)}, {s(sC,2)}")
        for k in range(npairs):
            e(f"v_cvt_pk_bf16_f32 {v(a+2*k)}, {v(a+2*k)}, {v(a+2*k+1)}")
        for k in range(npairs):
            row = 32 * r + 8 * (k // 2) + 2 * (k % 2)
            e(f"ds_write_b16 {v(aA)}, {v(a+2*k)} offset:{row*64}")
            e(f"ds_write_b16_d16_hi {v(aA)}, {v(a+2*k)} offset:{row*64+64}")

    a_out(0, 8)
    e(f"""s_cmp_ge_u32 {s(sW)}, 4
    s_cbranch_scc1 K_j5""")
    a_out(1, 8)
    e("s_branch K_j6")
    e.label("K_j5")
    e("s_mov_b32 exec_hi, 0")
    a_out(1, 1)
    e("s_mov_b32 exec_hi, -1")
    e.label("K_j6")
    prof("agemm")
    e.label("K_round")
    vTAB, vPI = t + 15, t + 14
    tabload = f"global_load_dword {v(vTAB)}, {v(t+1)}, {s(pWS,2)} sc1"
    e(f"""v_lshrrev_b32 {v(vPI)}, 1, {v(vTID)}
    s_lshl_b32 {s(sT0)}, s2, 2
    s_add_u32 {s(sT0)}, {s(sT0)}, {hex(WS_TAB)}
    v_lshl_add_u32 {v(t+1)}, {v(vPI)}, 10, {s(sT0)}
    {tabload}""")
    for k in range(4):
        e(f"v_mov_b32 {v(t+8+k)}, 0")
    e(f"""v_lshlrev_b32 {v(t+3)}, 4, {v(vTID)}
    v_add_u32 {v(t+3)}, {Z0}, {v(t+3)}""")
    for k in range(3):
        e(f"ds_write_b128 {v(t+3)}, {v(t+8,4)} offset:{8192*k}")
    e(f"""s_cmp_lg_u32 {s(sFirst)}, 0
    s_cbranch_scc1 K_z1
    s_movk_i32 {s(sT0)}, {(PACC - Z0 - 3*8192)//16}
    v_cmp_gt_u32 vcc, {s(sT0)}, {v(vTID)}
    s_mov_b64 exec, vcc
    ds_write_b128 {v(t+3)}, {v(t+8,4)} offset:{8192*3}
    s_mov_b64 exec, -1
    s_branch K_z2""")
    e.label("K_z1")
    for k in range(3, 7):
        e(f"ds_write_b128 {v(t+3)}, {v(t+8,4)} offset:{8192*k}")
    srd(e, rBT, s(pWS), s(pWS + 1), N, stride=256)
    e(f"""s_add_u32 {s(rPSI)}, {s(pWS)}, {hex(WS_PS)}
    s_addc_u32 {s(rPSI+1)}, {s(pWS+1)}, 0
    s_or_b32 {s(rPSI+1)}, {s(rPSI+1)}, {hex(16 << 16)}
    s_mov_b32 {s(rPSI+2)}, {N}
    s_mov_b32 {s(rPSI+3)}, 0x20000""")
    e.label("K_z2")
    poll("tab", tabload, f"v_cmp_le_i32 vcc, 0, {v(vTAB)}", True)
    prof("tab")
    vLC, vRA = t + 2, t + 3
    e(f"""v_bfe_u32 {v(vLC)}, {v(vTAB)}, 16, 15
    v_subrev_u32 {v(vLC)}, {s(sOff)}, {v(vLC)}
    v_cmp_lt_i32 vcc, {s(sLim)}, {v(vLC)}
    v_min_i32 {v(vLC)}, {s(sLim)}, {v(vLC)}
    s_mov_b64 {s(sM,2)}, vcc
    v_and_b32 {v(t+4)}, 1, {v(vTID)}
    v_lshlrev_b32 {v(t+4)}, 4, {v(t+4)}
    v_sub_u32 {v(vLC)}, {v(vLC)}, {v(t+4)}
    v_and_b32 {v(vRA)}, 0xffff, {v(vTAB)}
    v_mul_u32_u24 {v(t+5)}, {CH*8}, {v(vPI)}
    s_add_u32 {s(sT0)}, {s(sOff)}, {hex(WS_REC)}
    v_add3_u32 {v(vRA)}, {v(vRA)}, {v(t+5)}, {v(t+4)}
    v_add_u32 {v(vRA)}, {s(sT0)}, {v(vRA)}""")
    for j in range(6):
        e(f"""s_movk_i32 {s(sT0)}, {32*j}
        v_cmp_lt_i32 {s(masks[2*j],2)}, {s(sT0)}, {v(vLC)}
        s_movk_i32 {s(sT1)}, {32*j+8}
        v_cmp_lt_i32 {s(masks[2*j+1],2)}, {s(sT1)}, {v(vLC)}
        s_mov_b64 exec, {s(masks[2*j],2)}
        s_cbranch_execz K_ld
        buffer_load_dwordx4 {v(R0+4*j,4)}, {v(vRA)}, {s(rWS,4)}, 0 offen offset:{32*j} sc1""")
    e.label("K_ld")
    e(f"""s_mov_b64 exec, -1
    s_waitcnt lgkmcnt(0)""")
    bar("b6")
    e(f"""s_mov_b64 exec, {s(sM,2)}
    ds_write_b32 {v(vZ)}, {v(vONE)} offset:{FLAG}
    s_mov_b64 exec, -1
    s_cmp_eq_u32 {s(sFirst)}, 0
    s_cbranch_scc1 K_nf3""")
    e(f"""s_cmp_lg_u32 {s(sW)}, 7
    s_cbranch_scc1 K_nordy
    s_lshl_b32 {s(sT0)}, s2, 6
    s_add_u32 {s(sT0)}, {s(sT0)}, {hex(WS_RDY)}
    v_mov_b32 {v(t+4)}, {s(sT0)}
    s_mov_b64 exec, 1
    global_store_dword {v(t+4)}, {v(vONE)}, {s(pWS,2)}
    s_mov_b64 exec, -1""")
    e.label("K_nordy")
    w_frags(WP)
    e(f"""s_cmp_ge_u32 {s(sW)}, 4
    s_cbranch_scc1 K_h1""")
    gemm(YA, YB, WF, 8, True, True, True, True)
    e("s_branch K_nf3")
    e.label("K_h1")
    gemm(YA, YB, WF, 8, True, False, True, True)
    e.label("K_nf3")
    prof("hgemm")
    e(f"""v_mov_b32 {v(t+4)}, 8
    s_waitcnt vmcnt(0)""")
    prof("recs")
    for k in range(12):
        e(f"s_mov_b64 exec, {s(masks[k],2)}")
        if k % 2 == 0:
            e("s_cbranch_execz K_rk")
        e(f"""v_bfe_u32 {v(CA+k)}, {v(R0+2*k+1)}, 18, 9
        ds_add_rtn_u32 {v(RK+k)}, {v(CA+k)}, {v(t+4)} offset:{CNT}""")
    e.label("K_rk")
    rdyload = f"global_load_dword {v(t+15)}, {v(t+14)}, {s(pWS,2)} sc1"
    e(f"""s_mov_b64 exec, -1
    v_lshlrev_b32 {v(t+5)}, 3, {v(vL)}
    v_lshlrev_b32 {v(t+14)}, 6, {v(vPI)}
    v_add_u32 {v(t+14)}, {hex(WS_RDY)}, {v(t+14)}
    s_waitcnt lgkmcnt(0)""")
    bar("b7")
    e(f"""{rdyload}
    ds_read_b64 {v(t+8,2)}, {v(t+5)} offset:{CNT}
    ds_read_b32 {v(t+12)}, {v(vZ)} offset:{FLAG}
    s_waitcnt lgkmcnt(0)
    v_add_u32 {v(t+9)}, {v(t+8)}, {v(t+9)}
    v_mov_b32 {v(t+13)}, {v(t+9)}
    v_readfirstlane_b32 {s(sMore)}, {v(t+12)}""")
    scan64(e, t + 13)
    e(f"""v_sub_u32 {v(t+10)}, {v(t+13)}, {v(t+9)}
    v_readlane_b32 {s(sEnd8)}, {v(t+13)}, 63
    v_add_u32 {v(t+10)}, {LIST}, {v(t+10)}
    v_add_u32 {v(t+11)}, {v(t+10)}, {v(t+8)}
    ds_write_b64 {v(t+5)}, {v(t+10,2)} offset:{BASE}
    s_mov_b32 {s(sFirst)}, 0
    s_and_b32 {s(sEnd8)}, {s(sEnd8)}, -8
    s_cmp_le_u32 {s(sEnd8)}, {CAP*8}
    s_cbranch_scc1 K_fits
    s_movk_i32 {s(sEnd8)}, {CAP*8}
    s_cmp_lg_u32 {s(sLim)}, 64
    s_movk_i32 {s(sLim)}, 64
    s_cbranch_scc1 K_again""")
    e.label("K_fits")
    for k in range(12):
        e(f"s_mov_b64 exec, {s(masks[k],2)}")
        if k % 2 == 0:
            e("s_cbranch_execz K_pl1")
        e(f"ds_read_b32 {v(CA+k)}, {v(CA+k)} offset:{BASE}")
    e.label("K_pl1")
    e(f"""s_mov_b64 exec, -1
    v_add_u32 {v(t+5)}, {s(sEnd8)}, {v(t+5)}
    v_mov_b32 {v(t+8)}, 0
    v_mov_b32 {v(t+9)}, 0
    ds_write_b64 {v(t+5)}, {v(t+8,2)} offset:{LIST}
    s_waitcnt lgkmcnt(0)""")
    for k in range(12):
        e(f"s_mov_b64 exec, {s(masks[k],2)}")
        if k % 2 == 0:
            e("s_cbranch_execz K_pl2")
        e(f"""v_add_u32 {v(CA+k)}, {v(CA+k)}, {v(RK+k)}
        ds_write_b64 {v(CA+k)}, {v(R0+2*k,2)}""")
    e.label("K_pl2")
    e(f"""s_mov_b64 exec, -1
    s_add_u32 {s(sT0)}, {s(sEnd8)}, 255
    s_lshr_b32 {s(sT0)}, {s(sT0)}, 8
    s_lshr_b32 {s(sT1)}, {s(sT0)}, 3
    s_and_b32 {s(sT0)}, {s(sT0)}, 7
    s_mul_i32 {s(sP8)}, {s(sT1)}, {s(sW)}
    s_min_u32 {s(sT2)}, {s(sW)}, {s(sT0)}
    s_add_u32 {s(sP8)}, {s(sP8)}, {s(sT2)}
    s_cmp_lt_u32 {s(sW)}, {s(sT0)}
    s_addc_u32 {s(sT1)}, {s(sT1)}, {s(sP8)}
    s_lshl_b32 {s(sP8)}, {s(sP8)}, 8
    s_lshl_b32 {s(sT1)}, {s(sT1)}, 8
    s_min_u32 {s(sEnd8)}, {s(sEnd8)}, {s(sT1)}
    s_add_u32 {s(sT0)}, {s(sP8)}, {LIST}
    v_and_b32 {v(aLP)}, 31, {v(vL)}
    v_lshl_add_u32 {v(aLP)}, {v(aLP)}, 3, {s(sT0)}
    v_and_b32 {v(aLQ)}, 0x38, {v(vL)}
    v_add_u32 {v(aLQ)}, {s(sT0)}, {v(aLQ)}
    s_movk_i32 {s(sBN)}, -1000
    s_movk_i32 {s(sBC)}, -1000""")
    prof("placed")
    poll("rdy", rdyload, f"v_cmp_eq_u32 vcc, 0, {v(t+15)}", True)
    e("s_waitcnt lgkmcnt(0)")
    bar("b8")
    e(f"""s_cmp_ge_u32 {s(sP8)}, {s(sEnd8)}
    s_cbranch_scc1 K_notiles""")

    uid = [0]

    def S0():
        uid[0] += 1
        q = uid[0]
        e(f"ds_read_b64 {v(REC,2)}, {v(aLP)}")
        e(f"ds_read_u16 {v(G)}, {v(aLP)}")
        for j in range(4):
            e(f"ds_read_u16 {v(IDX+2*j)}, {v(aLQ)} offset:{64*j}")
        e(f"""s_sub_u32 {s(sT0)}, {s(sEnd8)}, {s(sP8)}
        s_lshr_b32 {s(sT0)}, {s(sT0)}, 3
        s_min_u32 {s(sT0)}, {s(sT0)}, 32
        s_sub_u32 {s(sT1)}, {s(sT0)}, 1
        s_waitcnt lgkmcnt(4)
        v_readlane_b32 {s(sT1)}, {v(REC)}, {s(sT1)}
        v_add_u32_sdwa {v(vP)}, {v(aPDc)}, {v(REC+1)} dst_sel:DWORD dst_unused:UNUSED_PAD src0_sel:DWORD src1_sel:WORD_1
        buffer_load_dwordx2 {v(PSV,2)}, {v(G,2)}, {s(rPSI,4)}, 0 idxen offen sc1
        ds_read_b64 {v(PDV,2)}, {v(vP)}
        s_lshr_b32 {s(sT1)}, {s(sT1)}, 16
        s_sub_u32 {s(sT1)}, {s(sT1)}, 16
        s_cmp_lt_i32 {s(sT1)}, {s(sBN)}
        s_cbranch_scc1 K_s0_{q}
        v_readfirstlane_b32 {s(sT2)}, {v(REC)}
        s_lshr_b32 {s(sBN)}, {s(sT2)}, 16
        v_subrev_u32 {v(aIB)}, {s(sBN)}, {v(aIBc)}
        s_cmp_lt_i32 {s(sT1)}, {s(sBN)}
        s_cbranch_scc1 K_s0_{q}
        s_add_u32 {s(sT1)}, {s(sBN)}, 16
        s_lshl_b32 {s(sT1)}, {s(sT1)}, 16
        v_cmp_gt_u32 vcc, {s(sT1)}, {v(REC)}
        s_bfm_b64 {s(sM,2)}, {s(sT0)}, 0
        s_and_b32 {s(sM)}, {s(sM)}, vcc_lo
        s_bcnt1_i32_b32 {s(sT0)}, {s(sM)}
        s_max_u32 {s(sT0)}, {s(sT0)}, 1""")
        e.label(f"K_s0_{q}")
        e(f"""s_bfm_b64 {s(sM,2)}, {s(sT0)}, 0
        s_lshl_b32 {s(sT0)}, {s(sT0)}, 3
        s_mov_b32 {s(sM+1)}, {s(sM)}
        s_add_u32 {s(sP8)}, {s(sP8)}, {s(sT0)}
        v_add_u32_sdwa {v(aIM)}, {v(aIB)}, {v(REC)} dst_sel:DWORD dst_unused:UNUSED_PAD src0_sel:DWORD src1_sel:WORD_1
        v_add_u32 {v(aLP)}, {s(sT0)}, {v(aLP)}
        v_add_u32 {v(aLQ)}, {s(sT0)}, {v(aLQ)}""")

    def DMA(half):
        for j in range(4):
            e(f"s_add_u32 m0, {s(sSTG)}, {1024*j}")
            e("s_nop 0")
            e(f"buffer_load_dwordx4 {v(IDX+2*j,2)}, {s(rBT,4)}, {s(s128) if half else 0} idxen offen sc1 lds")

    def RD():
        for k in range(4):
            e(f"ds_read_b128 {v(BR+4*k,4)}, {v(aBR+k)}")

    def AOP(tt):
        for q in range(2):
            e(f"ds_read_b64_tr_b16 {v(AO+2*q,2)}, {v(aAO)} offset:{tt*PLANE + 256*q}")

    def S1():
        e(f"""v_sub_f32 {v(PDV)}, {v(PDV)}, {v(PSV)}
        v_sub_f32 {v(PDV+1)}, {v(PDV+1)}, {v(PSV+1)}
        v_cvt_pk_bf16_f32 {v(vD)}, {v(PDV)}, {v(PDV+1)}
        v_dot2_f32_bf16 {v(vP)}, {v(vD)}, {v(vD)}, 0
        s_mov_b64 exec, {s(sM,2)}
        ds_write_b16 {v(aIM)}, {v(vD)}
        ds_write_b16_d16_hi {v(aIM)}, {v(vD)} offset:16
        v_cvt_pk_bf16_f32 {v(REC)}, {v(vP)}, {v(vP)}
        ds_write_b64 {v(aXT)}, {v(REC,2)} offset:64
        s_mov_b32 exec_hi, 0
        ds_write_b16 {v(aIM)}, {v(vONE)}
        s_mov_b64 exec, -1""")

    def rebase_ao():
        e(f"v_mad_u32_u24 {v(aAO)}, {v(vH32)}, {s(sBN)}, {v(aAOc)}")

    def S3():
        for k in range(4):
            e(f"ds_read_b64_tr_b16 {v(S4+2*k,2)}, {v(aS4)} offset:{80*8*k}")
        e(f"""s_mov_b64 exec, {s(sM,2)}
        ds_write_b16 {v(aIM)}, {v(vZ)}
        ds_write_b16 {v(aIM)}, {v(vZ)} offset:16
        s_mov_b64 exec, -1""")

    def xm(k, tt):
        if k < 2:
            b = BR + 8 * (tt & 1) + 4 * k
            e(f"{MFMA} {v(X,16)}, {v(b,4)}, {v(ID+4*k,4)}, {v(X,16) if k else 0}")
        else:
            e(f"{MFMA} {v(X,16)}, {v(SO,4)}, {v(AO,4)}, {v(X,16)}")

    OLD, aF0, aF1, aF2 = MP, MP + 2, MP + 3, MP + 4

    def flush_pre(base):
        e(f"""s_mul_i32 {s(sT0)}, {s(base)}, 136
        s_mul_i32 {s(sT1)}, {s(sW)}, 272
        s_add_u32 {s(sT1)}, {s(sT1)}, {NB*272}
        s_cmp_eq_u32 {s(base)}, {s(sFN)}
        s_cselect_b32 {s(sT1)}, {s(sT1)}, {s(sT0)}
        v_add_u32 {v(aF0)}, {s(sT1)}, {v(aFMc)}
        v_add_u32 {v(aF1)}, {s(sT0)}, {v(aFMc)}
        s_mul_i32 {s(sT0)}, {s(base)}, 24
        ds_read_b64 {v(OLD,2)}, {v(aF0)}
        v_add_u32 {v(aF2)}, {s(sT0)}, {v(aFPc)}""")

    def flush(base):
        A = lambda tt, r: ACC + 16 * tt + r
        for tt in range(4):
            for k in range(6):
                if tt == 0:
                    e(f"v_pk_mul_f32 {v(A(0,4+2*k),2)}, {v(A(0,4+2*k),2)}, {v(WX,2)}")
                else:
                    e(f"v_pk_fma_f32 {v(A(0,4+2*k),2)}, {v(A(tt,4+2*k),2)}, {v(WX+2*tt,2)}, {v(A(0,4+2*k),2)}")
        e(f"""s_waitcnt lgkmcnt(0)
        s_mov_b32 exec_hi, 0""")
        for tt in range(4):
            e(f"v_dot2_f32_bf16 {v(A(tt,0))}, {v(OLD+tt//2)}, {s((sK0,sK1)[tt&1])}, {v(A(tt,0))}")
        e("s_mov_b32 exec_hi, -1")
        Q = lambda c, i: A(1, 4 * c + i)
        for c in range(1, 4):
            for i in range(2):
                e(f"v_add_f32_dpp {v(Q(c,i))}, {v(A(0,4*c+i))}, {v(A(0,4*c+i))} row_ror:8 row_mask:0xf bank_mask:0x3")
        for c in range(1, 4):
            for i in range(2):
                e(f"v_add_f32_dpp {v(Q(c,i))}, {v(A(0,4*c+2+i))}, {v(A(0,4*c+2+i))} row_ror:8 row_mask:0xf bank_mask:0xc")
        P = lambda i: A(2, 4 + 2 * i)
        for i in range(4):
            for tp in range(2):
                e(f"v_cvt_pk_bf16_f32 {v(P(i)+tp)}, {v(A(2*tp,i))}, {v(A(2*tp+1,i))}")
        for c in range(1, 4):
            e(f"v_add_f32_dpp {v(Q(c,2))}, {v(Q(c,0))}, {v(Q(c,0))} row_half_mirror row_mask:0xf bank_mask:0x5")
        for c in range(1, 4):
            e(f"v_add_f32_dpp {v(Q(c,2))}, {v(Q(c,1))}, {v(Q(c,1))} row_half_mirror row_mask:0xf bank_mask:0xa")
        for c in range(1, 4):
            e(f"v_cvt_f64_f32 {v(Q(c,0),2)}, {v(Q(c,2))}")
        for c in range(1, 4):
            e(f"ds_add_f64 {v(aF2)}, {v(Q(c,0),2)} offset:{16*(c-1)}")
        e(f"""s_sub_u32 {s(sT0)}, {s(sLN)}, {s(base)}
        s_mov_b32 exec_hi, 0
        ds_write_b64 {v(aF0)}, {v(P(0),2)}""")
        for i in range(4):
            if i:
                e(f"s_cmp_ge_u32 {s(sT0)}, {2*i}")
                e("s_cselect_b32 exec_lo, -1, 0")
            else:
                e("s_mov_b32 exec_lo, 0")
            e(f"""s_cmp_ge_u32 {s(sT0)}, {8+2*i}
            s_cselect_b32 exec_hi, -1, 0
            ds_write_b64 {v(aF1)}, {v(P(i),2)} offset:{272*i}""")
        e("s_mov_b64 exec, -1")

    def wh_loads():
        e(f"""s_and_b32 {s(sT0)}, {s(sW)}, 3
        s_lshl_b32 {s(sT0)}, {s(sT0)}, 13
        s_add_u32 {s(sT0)}, {s(sT0)}, {hex(WS_WF + 4096)}
        v_lshl_add_u32 {v(IDX)}, {v(vL)}, 4, {s(sT0)}""")
        for k in range(8):
            e(f"global_load_dwordx4 {v(WF+4*k,4)}, {v(IDX)}, {s(pWS,2)} offset:{1024*k - 4096} sc1")

    def unit(tt, nxt, tag):
        e(f"v_exp_f32 {v(T)}, {v(X)}")
        e("s_setprio 1")
        for i in range(1, 8):
            e(f"v_exp_f32 {v(T+i)}, {v(X+i)}")
        e("s_setprio 2")
        for i in range(8, 16):
            e(f"v_exp_f32 {v(T+i)}, {v(X+i)}")
        if tt == 0:
            e(f"""s_cmp_eq_u32 {s(sBP)}, {s(sBC)}
            s_cbranch_scc1 K_nofl_{tag}
            s_cmp_lt_i32 {s(sBP)}, 0
            s_cbranch_scc1 K_nofl_{tag}""")
            flush(sBP)
            e.label(f"K_nofl_{tag}")
        for i in range(8):
            e(f"v_pk_fma_f32 {v(T+2*i,2)}, {v(T+2*i,2)}, {s(sC,2)}, {s(sC,2)}")
        for i in range(16):
            e(f"v_rcp_f32 {v(T+i)}, {v(T+i)}")
        for i in range(8):
            e(f"v_pk_mul_f32 {v(T+2*i,2)}, {v(T+2*i,2)}, {v(X+2*i,2)}")
        dox = tt < 3 or nxt
        e("s_waitcnt lgkmcnt(0)")
        if dox:
            xm(0, tt + 1)
        for i in range(8):
            e(f"v_cvt_pk_bf16_f32 {v(MP+i)}, {v(T+2*i)}, {v(T+2*i+1)}")
        e("s_setprio 3")
        if dox:
            xm(1, tt + 1)
            xm(2, tt + 1)
        a = ACC + 16 * tt
        e(f"""s_cmp_eq_u32 {s(sBP)}, {s(sBC)}
        s_cbranch_scc1 K_acc_{tag}{tt}
        {MFMA} {v(a,16)}, {v(S4,4)}, {v(MP,4)}, 0
        s_branch K_acd_{tag}{tt}""")
        e.label(f"K_acc_{tag}{tt}")
        e(f"{MFMA} {v(a,16)}, {v(S4,4)}, {v(MP,4)}, {v(a,16)}")
        e.label(f"K_acd_{tag}{tt}")
        e(f"{MFMA} {v(a,16)}, {v(S4+4,4)}, {v(MP+4,4)}, {v(a,16)}")

    def rotate_and_s0(pre):
        e(f"""s_mov_b32 {s(sBP)}, {s(sBC)}
        s_mov_b32 {s(sBC)}, {s(sBN)}""")
        if pre:
            e(f"""s_cmp_eq_u32 {s(sBP)}, {s(sBC)}
            s_cbranch_scc1 K_nopre""")
            flush_pre(sBP)
            e.label("K_nopre")
        e(f"""s_cmp_ge_u32 {s(sP8)}, {s(sEnd8)}
        s_cbranch_scc1 K_last""")
        S0()

    e(f"""s_setprio 3
    s_add_u32 {s(sT0)}, {s(sEnd8)}, {LIST - 6}
    v_mov_b32 {v(vD)}, {s(sT0)}
    ds_read_u16 {v(vD)}, {v(vD)}""")
    S0()
    e("s_waitcnt lgkmcnt(0)")
    DMA(0)
    e(f"""v_readfirstlane_b32 {s(sLN)}, {v(vD)}
    s_mov_b32 {s(sFN)}, {s(sBN)}
    s_cmp_lg_u32 {s(sLN)}, {s(sFN)}
    s_cbranch_scc1 K_nohub
    ds_write_b32 {v(vZ)}, {v(vONE)} offset:{FLAG+4}""")
    e.label("K_nohub")
    rebase_ao()
    AOP(0)
    e("s_waitcnt vmcnt(4)")
    S1()
    e(f"ds_read_b128 {v(SO,4)}, {v(aSO)}")
    e("s_waitcnt vmcnt(0)")
    RD()
    e("s_waitcnt lgkmcnt(0)")
    DMA(1)
    xm(0, 0); xm(1, 0); xm(2, 0)
    AOP(1)
    S3()
    prof("fill")
    rotate_and_s0(False)
    e(".p2align 6")
    e.label("K_loop")
    e("s_setprio 0")
    unit(0, True, "a")
    e("s_waitcnt vmcnt(1)")
    RD()
    AOP(2)
    e("s_waitcnt lgkmcnt(2)")
    DMA(0)
    e("s_setprio 0")
    unit(1, True, "a")
    AOP(3)
    e("s_waitcnt vmcnt(4)")
    S1()
    e("s_setprio 0")
    unit(2, True, "a")
    e("s_waitcnt vmcnt(0)")
    RD()
    rebase_ao()
    AOP(0)
    e(f"ds_read_b128 {v(SO,4)}, {v(aSO)}")
    e("s_waitcnt lgkmcnt(3)")
    DMA(1)
    e("s_setprio 0")
    unit(3, True, "a")
    AOP(1)
    S3()
    rotate_and_s0(True)
    e("s_branch K_loop")
    e.label("K_last")
    prof("last")
    e("s_setprio 0")
    unit(0, False, "b")
    e("s_waitcnt vmcnt(0)")
    RD()
    AOP(2)
    wh_loads()
    e("s_setprio 0")
    unit(1, False, "b")
    AOP(3)
    e("s_nop 4")
    e("s_setprio 0")
    unit(2, False, "b")
    e("s_nop 6")
    e("s_setprio 0")
    unit(3, False, "b")
    flush_pre(sBC)
    e("s_setprio 0")
    flush(sBC)
    e("s_branch K_post")
    e.label("K_notiles")
    e(f"s_movk_i32 {s(sFN)}, -1")
    wh_loads()
    e.label("K_post")
    prof("main")
    RA, RB = ACC, ACC + 16
    aH, aM = IDX, IDX + 4
    h_addr(aH, IDX + 2, True)
    h_frags(aH, IDX + 2, 2)
    e(f"""v_and_b32 {v(aM)}, 31, {v(vL)}
    v_mul_u32_u24 {v(aM)}, 272, {v(aM)}
    v_lshl_add_u32 {v(aM)}, {v(G+1)}, 1, {v(aM)}
    s_lshr_b32 {s(sT0)}, {s(sW)}, 2
    s_mul_i32 {s(sT0)}, {s(sT0)}, {64*272}
    s_add_u32 {s(sT0)}, {s(sT0)}, {MT}
    v_add_u32 {v(aM)}, {s(sT0)}, {v(aM)}
    s_mul_i32 {s(sT0)}, {s(sFN)}, 136
    s_add_u32 {s(sT0)}, {s(sT0)}, {MT}
    s_mul_i32 {s(sT1)}, {s(sW)}, 272
    s_add_u32 {s(sT1)}, {s(sT1)}, {MT + NB*272}
    v_lshl_add_u32 {v(MP)}, {v(vL)}, 2, {s(sT0)}
    v_lshl_add_u32 {v(MP+1)}, {v(vL)}, 2, {s(sT1)}
    s_waitcnt lgkmcnt(0)""")
    bar("b9")
    e(f"""ds_read_b32 {v(MP+4)}, {v(vZ)} offset:{FLAG+4}
    ds_read_b32 {v(MP+2)}, {v(MP)}
    ds_read_b32 {v(MP+3)}, {v(MP+1)}
    s_cmp_ge_u32 {s(sW)}, 4
    s_cbranch_scc1 K_e1""")
    gemm(RA, RB, ID, 2, True, True, True, False)
    e("s_branch K_e2")
    e.label("K_e1")
    gemm(RA, RB, ID, 2, True, False, True, False)
    e.label("K_e2")
    e(f"""s_cmp_lt_i32 {s(sFN)}, 0
    s_cbranch_scc1 K_fx2
    s_waitcnt lgkmcnt(0)
    v_readfirstlane_b32 {s(sT0)}, {v(MP+4)}
    v_lshlrev_b32 {v(MP+5)}, 16, {v(MP+2)}
    v_and_b32 {v(MP+6)}, 0xffff0000, {v(MP+2)}
    s_cmp_eq_u32 {s(sT0)}, 0
    s_cbranch_scc1 K_fx1
    ds_pk_add_bf16 {v(MP)}, {v(MP+3)}
    s_branch K_fx2""")
    e.label("K_fx1")
    e(f"""v_dot2_f32_bf16 {v(MP+5)}, {v(MP+3)}, {s(sK0)}, {v(MP+5)}
    v_dot2_f32_bf16 {v(MP+6)}, {v(MP+3)}, {s(sK1)}, {v(MP+6)}
    s_nop 2
    v_cvt_pk_bf16_f32 {v(MP+5)}, {v(MP+5)}, {v(MP+6)}
    ds_write_b32 {v(MP)}, {v(MP+5)}""")
    e.label("K_fx2")
    e("s_waitcnt vmcnt(0) lgkmcnt(0)")
    bar("b10")
    for k in range(8):
        e(f"ds_read_b128 {v(HF0+4*k,4)}, {v(aM)} offset:{32*k}")
        e(f"ds_read_b128 {v(HF1+4*k,4)}, {v(aM)} offset:{32*k + 32*272}")
    rOUT = rH
    srd(e, rOUT, s(pOUT), s(pOUT + 1), N * 256)
    aRD, aST = IDX + 2, IDX + 6
    e(f"""s_mov_b32 {s(sM)}, 1.0
    s_mov_b32 {s(sM+1)}, 1.0
    v_lshrrev_b32 {v(aST)}, 2, {v(vL)}
    v_and_b32 {v(vD)}, 3, {v(vL)}
    v_lshlrev_b32 {v(vD)}, 4, {v(vD)}
    s_mul_i32 {s(sT1)}, {s(sW)}, 2560
    s_add_u32 {s(sT1)}, {s(sT1)}, {IMG}
    v_mul_u32_u24 {v(aRD)}, 80, {v(aST)}
    v_add3_u32 {v(aRD)}, {v(aRD)}, {v(vD)}, {s(sT1)}
    s_lshr_b32 {s(sT0)}, {s(sW)}, 2
    s_lshl_b32 {s(sT0)}, {s(sT0)}, 6
    s_add_u32 {s(sT0)}, {s(sT0)}, {s(sNB)}
    s_lshl_b32 {s(sT0)}, {s(sT0)}, 8
    s_and_b32 {s(sT1)}, {s(sW)}, 3
    s_lshl_b32 {s(sT1)}, {s(sT1)}, 6
    s_add_u32 {s(sT2)}, {s(sT0)}, {s(sT1)}
    v_lshl_add_u32 {v(aST)}, {v(aST)}, 8, {v(vD)}
    v_add_u32 {v(aST)}, {s(sT2)}, {v(aST)}
    s_cmp_ge_u32 {s(sW)}, 4
    s_cbranch_scc1 K_e4""")

    def silu_out(Yr, R, n):
        for i in range(n // 2):
            e(f"v_pk_mul_f32 {v(T+2*i,2)}, {v(Yr+2*i,2)}, {s(sC,2)}")
        for i in range(n):
            e(f"v_exp_f32 {v(T+i)}, {v(T+i)}")
        if n == 2:
            e("s_nop 0")
        for i in range(n // 2):
            e(f"v_pk_add_f32 {v(T+2*i,2)}, {v(T+2*i,2)}, {s(sM,2)}")
        for i in range(n):
            e(f"v_rcp_f32 {v(T+i)}, {v(T+i)}")
        if n == 2:
            e("s_nop 0")
        for i in range(n // 2):
            e(f"v_pk_fma_f32 {v(T+2*i,2)}, {v(T+2*i,2)}, {v(Yr+2*i,2)}, {v(R+2*i,2)}")
        for i in range(n // 2):
            e(f"v_cvt_pk_bf16_f32 {v(X+i)}, {v(T+2*i)}, {v(T+2*i+1)}")

    def out_tile(Yr, R, rowoff, d):
        silu_out(Yr, R, 16)
        for j in range(4):
            e(f"ds_write_b64 {v(aXT)}, {v(X+2*j,2)} offset:{16*j}")
        e(f"""ds_read_b128 {v(d,4)}, {v(aRD)}
        ds_read_b128 {v(d+4,4)}, {v(aRD)} offset:{16*80}
        v_add_u32 {v(vD)}, {rowoff*256}, {v(aST)}
        v_add_u32 {v(vP)}, {rowoff*256+4096}, {v(aST)}
        s_waitcnt lgkmcnt(1)
        buffer_store_dwordx4 {v(d,4)}, {v(vD)}, {s(rOUT,4)}, 0 offen
        s_waitcnt lgkmcnt(0)
        buffer_store_dwordx4 {v(d+4,4)}, {v(vP)}, {s(rOUT,4)}, 0 offen""")

    more = f"""s_cmp_lg_u32 {s(sMore)}, 0
    s_cbranch_scc1 K_more
    s_nop 8"""
    gemm(YA, YB, WF, 8, True, True, False, True)
    e(more)
    out_tile(YA, RA, 0, BR)
    out_tile(YB, RB, 32, BR + 8)
    e("s_branch K_e5")
    e.label("K_e4")
    gemm(YA, YB, WF, 8, True, False, False, True)
    e(more)
    out_tile(YA, RA, 0, BR)
    silu_out(YB, RB, 2)
    e(f"""v_lshl_add_u32 {v(vD)}, {v(vL)}, 1, {s(sT2)}
    v_add_u32 {v(vD)}, {32*256}, {v(vD)}
    s_mov_b32 exec_hi, 0
    buffer_store_short {v(X)}, {v(vD)}, {s(rOUT,4)}, 0 offen
    buffer_store_short_d16_hi {v(X)}, {v(vD)}, {s(rOUT,4)}, 0 offen offset:256
    s_mov_b32 exec_hi, -1""")
    e.label("K_e5")
    e(f"""s_sub_u32 {s(sT0)}, {N}, {s(sNB)}
    s_min_u32 {s(sT0)}, {s(sT0)}, {NB}
    s_mul_i32 {s(sT0)}, {s(sT0)}, 3
    v_lshl_add_u32 {v(T)}, {s(sW)}, 6, {v(vL)}
    v_subrev_u32 {v(T)}, {512 - 3*NB}, {v(T)}
    v_cmp_gt_u32 vcc, {s(sT0)}, {v(T)}
    s_and_b64 exec, exec, vcc
    s_cbranch_execz K_fin
    v_mul_u32_u24 {v(T+1)}, 0x5556, {v(T)}
    v_lshrrev_b32 {v(T+1)}, 16, {v(T+1)}
    v_add_u32 {v(T+1)}, {v(T+1)}, {v(T)}
    v_lshlrev_b32 {v(T+1)}, 2, {v(T+1)}
    v_add_u32 {v(T+2)}, {PD}, {v(T+1)}
    v_lshlrev_b32 {v(T+1)}, 4, {v(T)}
    v_add_u32 {v(T+1)}, {PACC}, {v(T+1)}
    ds_read_b32 {v(T+2)}, {v(T+2)} offset:4
    ds_read_b128 {v(T+4,4)}, {v(T+1)}
    s_mul_i32 {s(sT0)}, {s(sNB)}, 6
    s_add_u32 {s(sT0)}, {s(sT0)}, {N*256}
    v_lshl_add_u32 {v(T)}, {v(T)}, 1, {s(sT0)}
    s_waitcnt lgkmcnt(0)
    v_add_f64 {v(T+4,2)}, {v(T+4,2)}, {v(T+6,2)}
    v_cvt_f32_f64 {v(T+1)}, {v(T+4,2)}
    v_add_f32 {v(T+1)}, {v(T+1)}, {v(T+2)}
    v_cvt_pk_bf16_f32 {v(T+1)}, {v(T+1)}, {v(T+1)}
    global_store_short {v(T)}, {v(T+1)}, {s(pOUT,2)}""")
    e.label("K_fin")
    prof.finish(pWS, sW, T + 8)
    e.label("K_end")
    e("s_endpgm")
    e.label("K_more")
    e(f"s_add_u32 {s(sOff)}, {s(sOff)}, {s(sLim)}")
    e.label("K_again")
    e(f"""s_waitcnt vmcnt(0) lgkmcnt(0)
    s_barrier
    v_lshl_add_u32 {v(vTID)}, {s(sW)}, 6, {v(vL)}
    v_and_b32 {v(t+1)}, 0x1fc, {v(vTID)}
    ds_write_b32 {v(t+1)}, {v(vZ)} offset:{CNT}
    ds_write_b32 {v(vZ)}, {v(vZ)} offset:{FLAG}
    ds_write_b32 {v(vZ)}, {v(vZ)} offset:{FLAG+4}
    s_branch K_round""")
    return e, lds, nvgpr, prof.names


HEADER = """; EGNN layer (N=25000 nodes, E=400000 edges, D=128), bf16 in / bf16 out.  Generated by gen/gen.py.
"""


def main():
    a, lds, nv, pn = kernel()
    for p in check_hazards(a.lines):
        print("HAZARD", p, file=sys.stderr)
    a.lines = [ln + " sc1" if ln.startswith(("global_store", "buffer_store")) else ln for ln in a.lines]
    out = HEADER
    out += f"; @launch grid=({NWG},1,1) block=(512,1,1) lds={lds}\n"
    if OPT["prof"]:
        out += f"; prof0 {' '.join(pn)}\n"
    out += '.amdgcn_target "amdgcn-amd-amdhsa--gfx950"\n.text\n'
    out += f".globl {NAME}\n.p2align 8\n.type {NAME},@function\n" + a.text()
    out += f""".section .rodata,"a"
.p2align 6
.amdhsa_kernel {NAME}
  .amdhsa_next_free_vgpr {nv}
  .amdhsa_next_free_sgpr 102
  .amdhsa_accum_offset {(nv + 3) // 4 * 4}
  .amdhsa_group_segment_fixed_size 0
  .amdhsa_kernarg_size 88
  .amdhsa_user_sgpr_count 2
  .amdhsa_user_sgpr_kernarg_segment_ptr 1
  .amdhsa_system_sgpr_workgroup_id_x 1
.end_amdhsa_kernel
"""
    open(sys.argv[1], "w").write(out)
    print(f"lds {lds}  vgpr {nv}", file=sys.stderr)


main()
```
